```python
import torch

def _softmax(x, axis=-1):
    return torch.softmax(x, dim=axis)

def _gelu(x):
    return torch.nn.functional.gelu(x, approximate='tanh')

def _silu(x):
    return torch.nn.functional.silu(x)

def _sigmoid(x):
    return torch.sigmoid(x)

def _layernorm(x, axis=-1, eps=1e-05):
    m = x.mean(dim=axis, keepdim=True)
    v = x.var(dim=axis, keepdim=True, unbiased=False)
    return (x - m) / torch.sqrt(v + eps)

def _scatter_add(tgt, idx, src, axis=0):
    return tgt.clone().index_add_(axis, idx, src)

def _segment_sum(src, seg, n):
    out = torch.zeros((n,) + src.shape[1:], dtype=src.dtype)
    return out.index_add_(0, seg, src)

def _pad(x, pw):
    flat = tuple((v for pair in reversed(pw) for v in pair))
    return torch.nn.functional.pad(x, flat)
kernel_name = 'adaLN_cond__ssm_conv_h3__glu_gated_reglu__prompt'

def setup_inputs():

    _w = lambda a: (lambda t: t.to(torch.bfloat16) if t.is_floating_point() else t)(torch.as_tensor(a))

    def _A_setup():
        B, S, D = (1, 2048, 448)
        ks = 4
        return {'q': _w((lambda *s: torch.randn(*s, dtype=torch.bfloat16) * 0.05)(B, S, D)), 'k': _w((lambda *s: torch.randn(*s, dtype=torch.bfloat16) * 0.8)(B, S, D)), 'v': _w((lambda *s: torch.randn(*s, dtype=torch.bfloat16) * 0.8)(B, S, D)), 'shift_k': _w((lambda *s: torch.randn(*s, dtype=torch.bfloat16) * 0.8)(D, ks) * 0.5), 'ssm_k': _w((lambda *s: torch.randn(*s, dtype=torch.bfloat16) * 0.8)(D, S) * (1.0 / S ** 0.5)), 'ssm_D': _w((lambda *s: torch.randn(*s, dtype=torch.bfloat16) * 0.8)(D))}
    _A_in = _A_setup()

    def _B_setup():
        B, S, D, F = (1, 2048, 448, 1792)
        return {'x': _w((lambda *s: torch.randn(*s, dtype=torch.bfloat16) * 0.05)(B, S, D)), 'W_gate': _w((lambda *s: torch.randn(*s, dtype=torch.bfloat16) * 0.8)(D, F) * (2.0 / D) ** 0.5), 'W_up': _w((lambda *s: torch.randn(*s, dtype=torch.bfloat16) * 0.8)(D, F) * (2.0 / D) ** 0.5), 'W_down': _w((lambda *s: torch.randn(*s, dtype=torch.bfloat16) * 0.8)(F, D) * (1.0 / F) ** 0.5)}
    _B_in = _B_setup()
    return {'A_q': _A_in['q'], 'A_k': _A_in['k'], 'A_v': _A_in['v'], 'A_shift_k': _A_in['shift_k'], 'A_ssm_k': _A_in['ssm_k'], 'A_ssm_D': _A_in['ssm_D'], 'B_x': _B_in['x'], 'B_W_gate': _B_in['W_gate'], 'B_W_up': _B_in['W_up'], 'B_W_down': _B_in['W_down'], 'c': _w((lambda *s: torch.randn(*s, dtype=torch.bfloat16) * 0.2)(1, 448) * 8.0), 'w_mod': _w((lambda *s: torch.randn(*s, dtype=torch.bfloat16) * 0.2)(448, 6 * 448) * 448 ** (-0.5) * 8.0)}

def reference(A_q, A_k, A_v, A_shift_k, A_ssm_k, A_ssm_D, B_x, B_W_gate, B_W_up, B_W_down, c, w_mod):

    def _A_ref(q, k, v, shift_k, ssm_k, ssm_D):
        B, S, D = q.shape
        ks = shift_k.shape[-1]
        k_pad = _pad(k, ((0, 0), (ks - 1, 0), (0, 0)))
        k_shift = torch.zeros_like(k)
        for t in range(ks):
            k_shift = k_shift + k_pad[:, t:t + S, :] * shift_k[:, ks - 1 - t][None, None, :]
        kv = k_shift * v
        L = 2 * S
        kv_pad = _pad(kv, ((0, 0), (0, S), (0, 0)))
        kf_pad = _pad(ssm_k, ((0, 0), (0, S)))
        kv_f = (lambda x, axes=(-2, -1): torch.fft.rfft2(x.float(), dim=axes))(kv_pad[:, None, :, :], axes=(1, 2))
        kf_f = (lambda x, axes=(-2, -1): torch.fft.rfft2(x.float(), dim=axes))(kf_pad[:, None, :], axes=(1, 2))
        kf_f = (lambda x, *d: x.permute(*d))(kf_f, 1, 2, 0)
        y_f = kv_f * kf_f[None, :, :, :]
        y = (lambda x, s, axes=(-2, -1): torch.fft.irfft2(x, s=s, dim=axes).to(torch.bfloat16))(y_f, (1, L), axes=(1, 2))[:, 0, :S, :]
        y = y + kv * ssm_D[None, None, :]
        return q * y

    def _B_ref(x, W_gate, W_up, W_down):
        gate = torch.einsum('bsd,df->bsf', x, W_gate)
        up = torch.einsum('bsd,df->bsf', x, W_up)
        gate = gate * (lambda x, dt: x.to(dt))(gate > 0, gate.dtype)
        h = gate * up
        return torch.einsum('bsf,fd->bsd', h, W_down)
    x = A_q
    mod = (_silu(c) @ w_mod).reshape(c.shape[0], 6, 1, -1)
    sa, ca, ga, sb, cb, gb = (mod[:, 0].clone(), mod[:, 1].clone(), mod[:, 2].clone(), mod[:, 3].clone(), mod[:, 4].clone(), mod[:, 5].clone())
    h = _layernorm(x, axis=-1) * (1 + ca) + sa
    x = x + ga * _A_ref(h, A_k, A_v, A_shift_k, A_ssm_k, A_ssm_D)
    h = _layernorm(x, axis=-1) * (1 + cb) + sb
    x = x + gb * _B_ref(h, B_W_gate, B_W_up, B_W_down)
    return x
```

```python
import re


def v(a, n=1):
    return f"v{a}" if n == 1 else f"v[{a}:{a+n-1}]"


def a(x, n=1):
    return f"a{x}" if n == 1 else f"a[{x}:{x+n-1}]"


def s(x, n=1):
    return f"s{x}" if n == 1 else f"s[{x}:{x+n-1}]"


class Asm:
    def __init__(self):
        self.lines = []

    def __call__(self, text):
        for ln in text.split("\n"):
            ln = ln.strip()
            if ln:
                self.lines.append(ln)

    def label(self, name):
        self.lines.append(name + ":")

    def srd(self, d, base, nbytes, add=0):
        if add:
            self(f"s_add_u32 s{d}, s{base}, {add:#x}")
            self(f"s_addc_u32 s{d+1}, s{base+1}, 0")
        elif d != base:
            self(f"s_mov_b32 s{d}, s{base}")
            self(f"s_mov_b32 s{d+1}, s{base+1}")
        self(f"s_mov_b32 s{d+2}, {nbytes:#x}")
        self(f"s_mov_b32 s{d+3}, 0x20000")

    def text(self):
        out = []
        for ln in self.lines:
            out.append(ln if ln.endswith(":") or ln.startswith(".") or ln.startswith(";") else "    " + ln)
        return "\n".join(out) + "\n"


_REG = re.compile(r"\b([vas])(?:(\d+)\b|\[(\d+):(\d+)\])")
TRANS = ("v_exp_f32", "v_log_f32", "v_rcp_f32", "v_rsq_f32", "v_sqrt_f32", "v_sin_f32", "v_cos_f32")


def regs(op):
    r = set()
    for m in _REG.finditer(op):
        k = m.group(1)
        if m.group(2) is not None:
            r.add((k, int(m.group(2))))
        else:
            r.update((k, i) for i in range(int(m.group(3)), int(m.group(4)) + 1))
    if re.search(r"\bvcc\b", op):
        r.add(("s", "vcc"))
    if re.search(r"\bm0\b", op):
        r.add(("s", "m0"))
    return r


def parse(ln):
    ln = ln.split(";")[0].strip()
    m = re.match(r"(\S+)\s*(.*)", ln)
    mn, rest = m.group(1), m.group(2)
    ops = [o.strip() for o in re.split(r",(?![^\[]*\])", rest)] if rest else []
    W, R = set(), set()
    kind = "other"
    if mn.startswith("v_mfma"):
        kind = "mfma"
        W = regs(ops[0])
        R = regs(ops[1]) | regs(ops[2]) | regs(ops[3])
    elif mn.startswith("v_"):
        kind = "valu"
        W = regs(ops[0])
        R = set().union(*[regs(o) for o in ops[1:]]) if len(ops) > 1 else set()
        if mn.startswith(("v_fmac", "v_dot2c", "v_pk_fmac", "v_writelane")) or "dpp" in mn or "row_" in rest or "quad_perm" in rest:
            R |= W
        if mn.startswith(("v_permlane16_swap", "v_permlane32_swap", "v_swap")):
            W |= regs(ops[1])
            R |= W
        if mn.startswith(("v_add_co", "v_addc_co", "v_sub_co", "v_subb_co")):
            W |= regs(ops[1])
    elif mn.startswith(("buffer_", "global_")):
        kind = "vmem"
        allr = set().union(*[regs(o) for o in ops])
        if "load" in mn and not re.search(r"\blds\b", rest) and "_lds_" not in mn:
            W = regs(ops[0])
            R = set().union(*[regs(o) for o in ops[1:]])
        else:
            R = allr
            if re.search(r"\blds\b", rest) or "_lds_" in mn:
                R.add(("s", "m0"))
    elif mn.startswith("ds_"):
        kind = "ds"
        if "read" in mn or "permute" in mn or "swizzle" in mn:
            W = regs(ops[0])
            R = set().union(*[regs(o) for o in ops[1:]])
        else:
            R = set().union(*[regs(o) for o in ops])
    elif mn.startswith("s_"):
        kind = "salu"
        if ops and not mn.startswith(("s_cmp", "s_waitcnt", "s_nop", "s_branch", "s_cbranch", "s_barrier", "s_setprio", "s_sleep", "s_endpgm", "s_bitcmp")):
            W = regs(ops[0])
            R = set().union(*[regs(o) for o in ops[1:]]) if len(ops) > 1 else set()
        else:
            R = set().union(*[regs(o) for o in ops]) if ops else set()
    return dict(mn=mn, ops=ops, rest=rest, W=W, R=R, kind=kind, text=ln)


def passes(mn):
    if "32x32" in mn:
        return 8
    if "16x16" in mn:
        return 4
    return 2


def check_hazards(lines, name=""):
    ins = [parse(l) for l in lines if not (l.endswith(":") or l.startswith(".") or l.startswith(";"))]
    bad = []
    for j, c in enumerate(ins):
        dist = 0
        for i in range(j - 1, max(-1, j - 24), -1):
            p = ins[i]
            need = 0
            vW = {r for r in p["W"] if r[0] in "va"}
            sW = {r for r in p["W"] if r[0] == "s"}
            if p["kind"] == "valu":
                dl = p["mn"].startswith("v_dot")
                if c["kind"] == "mfma" and vW & c["R"]:
                    need = max(need, 3 if dl else 2)
                if c["kind"] == "valu":
                    if c["mn"].startswith("v_permlane") and vW & c["R"]:
                        need = max(need, 2)
                    if ("row_" in c["rest"] or "quad_perm" in c["rest"] or "wave_" in c["rest"]) and vW & c["R"]:
                        need = max(need, 2)
                    if c["mn"].startswith(("v_readlane", "v_readfirstlane")) and vW & c["R"]:
                        need = max(need, 1)
                    if p["mn"].startswith(TRANS) and vW & c["R"] and not c["mn"].startswith(TRANS):
                        need = max(need, 1)
                    if sW & c["R"]:
                        need = max(need, 4 if c["mn"].startswith(("v_readlane", "v_writelane")) else 2)
                    if ("sdwa" in p["mn"] or "dst_sel" in p["rest"]) and vW & (c["R"] | c["W"]):
                        need = max(need, 1)
                    if dl and vW & (c["R"] | c["W"]):
                        same = c["mn"] == p["mn"]
                        srcab = set().union(*[regs(o) for o in c["ops"][1:3]]) if same else None
                        if not same or (vW & srcab):
                            need = max(need, 3)
                if dl and c["kind"] in ("vmem", "ds") and vW & c["R"]:
                    need = max(need, 3)
                if c["kind"] == "vmem" and sW & c["R"]:
                    need = max(need, 5)
                if p["mn"].startswith("v_cmpx") and c["kind"] == "mfma":
                    need = max(need, 4)
            if p["kind"] == "salu" and ("s", "m0") in p["W"] and c["kind"] == "vmem" and ("s", "m0") in c["R"]:
                need = max(need, 1)
            if p["kind"] == "vmem" and "store" in p["mn"] and ("x4" in p["mn"] or "x3" in p["mn"]):
                data = regs(p["ops"][0]) if p["mn"].startswith("buffer") else regs(p["ops"][1])
                if data & c["W"]:
                    need = max(need, 2 if c["kind"] == "valu" else 1)
            if p["kind"] == "mfma":
                n = passes(p["mn"])
                D = p["W"]
                if c["kind"] == "mfma":
                    C = regs(c["ops"][3])
                    AB = regs(c["ops"][1]) | regs(c["ops"][2])
                    if D & AB:
                        need = max(need, {2: 5, 4: 8, 8: 12}[n])
                    if D & C and not (D == C and passes(c["mn"]) == n):
                        need = max(need, {2: 4, 4: 6, 8: 10}[n])
                    if D & c["W"] and not (D & C):
                        need = max(need, 0)
                elif c["kind"] in ("valu", "vmem", "ds"):
                    if D & (c["R"] | c["W"]):
                        need = max(need, {2: 5, 4: 8, 8: 12}[n])
                    if c["kind"] == "valu" and regs(p["ops"][3]) & c["W"]:
                        need = max(need, {2: 1, 4: 3, 8: 7}[n])
            if need > dist:
                bad.append(f"{name}: need {need} have {dist}: [{p['text']}] -> [{c['text']}]")
            if p["mn"] == "s_nop":
                dist += int(p["ops"][0], 0) + 1
            else:
                dist += 1
            if p["mn"] in ("s_branch", "s_endpgm", "s_setpc_b64"):
                break
    return bad
```

```python
import sys
from asmlib import Asm, v, a, s, check_hazards

NAME = "adaLN_cond__ssm_conv_h3__glu_gated_reglu__prompt"
SD = 2048 * 448 * 2
WS_KVT, WS_QP, WS_X1 = 0x0, 0x200000, 0x400000
WS_STAT, WS_MODP, WS_TAB, WS_GBF = 0x600000, 0x610000, 0x620000, 0x621000
WS_H, H_BYTES = 0x800000, 64 * 112 * 1024
WS_STAMP = 0x1000000
OPT = dict(stamp=False, nt=True, pf=True, extra=0)
LOG2E = 0x3FB8AA3B


def NT():
    return " nt" if OPT["nt"] else ""


class Stamps:
    def __init__(self, k, kid, first):
        self.k, self.kid, self.first, self.n = k, kid, first, 0

    def mark(self):
        if OPT["stamp"]:
            self.k(f"s_memrealtime {s(self.first + 2*self.n, 2)}")
            self.k("s_waitcnt lgkmcnt(0)")
            self.n += 1

    def flush(self, ws, srd, vt, tid):
        if not OPT["stamp"]:
            return
        k = self.k
        self.mark()
        k.srd(srd, ws, 0x10000, WS_STAMP + self.kid * 0x10000)
        k(f"s_lshl_b32 s3, s2, 6")
        k(f"v_lshlrev_b32 v{vt}, 16, v{tid}")
        for i in range(self.n):
            k(f"v_mov_b32 v{vt+1}, s{self.first + 2*i}")
            k(f"buffer_store_dword v{vt+1}, v{vt}, {s(srd,4)}, s3 offen offset:{4*i}")


def unpack(k, lo, hi, src):
    k(f"v_lshlrev_b32 v{lo}, 16, v{src}")
    k(f"v_and_b32 v{hi}, 0xffff0000, v{src}")


def dpp_add(k, r, ctrl):
    k(f"v_add_f32_dpp v{r}, v{r}, v{r} {ctrl} row_mask:0xf bank_mask:0xf")


def reduce8(k, r0, r1):
    for ctrl in ("quad_perm:[1,0,3,2]", "quad_perm:[2,3,0,1]", "row_half_mirror"):
        k("s_nop 0")
        dpp_add(k, r0, ctrl)
        dpp_add(k, r1, ctrl)


def gen_k0():
    k = Asm()
    st = Stamps(k, 0, 60)
    k.label("k0_prep_kernel")
    st.mark()
    k("s_cmp_ge_u32 s2, 498")
    k("s_cbranch_scc1 k0_end")
    k("s_load_dwordx8 s[4:11], s[0:1], 0")
    k("s_load_dwordx4 s[12:15], s[0:1], 80")
    k("s_load_dwordx2 s[16:17], s[0:1], 112")
    k("s_cmp_ge_u32 s2, 288")
    k("s_cbranch_scc1 k0_mod")
    k("s_cmp_ge_u32 s2, 224")
    k("s_cbranch_scc1 k0_stat")
    k("s_and_b32 s3, s2, 7")
    k("s_lshr_b32 s18, s2, 3")
    k("s_and_b32 s19, s18, 3")
    k("s_lshl2_add_u32 s19, s3, s19")
    k("s_lshr_b32 s18, s18, 2")
    k("s_mul_i32 s20, s19, 57344")
    k("s_lshl_b32 s21, s18, 7")
    k("s_add_u32 s20, s20, s21")
    k("v_and_b32 v8, 31, v0")
    k("v_lshrrev_b32 v9, 5, v0")
    k("v_mul_u32_u24 v1, 7168, v9")
    k("v_lshl_add_u32 v1, v8, 2, v1")
    k("v_add_u32 v1, s20, v1")
    k("v_add_u32 v2, 0xfffff580, v1")
    k("s_lshl_b32 s21, s18, 9")
    k("v_lshl_add_u32 v3, v8, 4, s21")
    k("s_movk_i32 s22, 4480")
    k("s_waitcnt lgkmcnt(0)")
    k.srd(24, 6, SD)
    k.srd(28, 8, SD)
    k.srd(32, 10, 3584)
    k.srd(36, 4, SD)
    KR, VR, QR = 10, 21, 32
    for j in range(3):
        k(f"buffer_load_dword v{KR+j}, v2, s[24:27], 0 offen offset:{896*j}{NT()}")

    def rows(dst, srd):
        for j in range(8):
            if j < 5:
                k(f"buffer_load_dword v{dst+j}, v1, {s(srd,4)}, 0 offen offset:{896*j}{NT()}")
            else:
                k(f"buffer_load_dword v{dst+j}, v1, {s(srd,4)}, s22 offen offset:{896*(j-5)}{NT()}")
    rows(KR + 3, 24)
    k("buffer_load_dwordx4 v[4:7], v3, s[32:35], 0 offen")
    rows(VR, 28)
    rows(QR, 36)
    k("s_branch k0_tile_body")

    k.label("k0_stat")
    k("s_sub_u32 s3, s2, 224")
    k("s_and_b32 s18, s3, 7")
    k("s_lshr_b32 s3, s3, 3")
    k("s_lshl3_add_u32 s3, s18, s3")
    k("s_lshl_b32 s3, s3, 5")
    k("v_lshrrev_b32 v1, 3, v0")
    k("v_add_u32 v1, s3, v1")
    k("v_and_b32 v2, 7, v0")
    k("v_mul_u32_u24 v3, 896, v1")
    k("v_lshl_add_u32 v3, v2, 4, v3")
    k("s_waitcnt lgkmcnt(0)")
    k.srd(36, 4, SD)
    for j in range(7):
        k(f"buffer_load_dwordx4 {v(8+4*j,4)}, v3, s[36:39], 0 offen offset:{128*j}{NT()}")
    k("s_branch k0_stat_body")

    k.label("k0_mod")
    k("s_sub_u32 s3, s2, 288")
    k("s_mul_i32 s18, s3, 1561")
    k("s_lshr_b32 s18, s18, 16")
    k("s_mul_i32 s19, s18, 42")
    k("s_sub_u32 s19, s3, s19")
    k("s_mul_i32 s20, s18, 96")
    k("v_lshrrev_b32 v1, 3, v0")
    k("v_add_u32 v1, s20, v1")
    k("v_and_b32 v2, 7, v0")
    k("v_mul_u32_u24 v3, 5376, v1")
    k("v_lshl_add_u32 v3, v2, 4, v3")
    k("s_lshl_b32 s20, s19, 7")
    k("v_add_u32 v3, s20, v3")
    k("v_add_u32 v4, 172032, v3")
    k("v_add_u32 v5, 344064, v3")
    k("v_lshlrev_b32 v1, 1, v1")
    k("s_waitcnt lgkmcnt(0)")
    k.srd(24, 12, 896)
    k.srd(28, 14, 448 * 5376)
    for j in range(3):
        k(f"buffer_load_ushort v{20+j}, v1, s[24:27], 0 offen offset:{64*j}")
    for j in range(3):
        k(f"buffer_load_dwordx4 {v(8+4*j,4)}, v{3+j}, s[28:31], 0 offen{NT()}")
    k.srd(32, 16, 5 * 10752, WS_MODP)
    k(f"s_mov_b32 s21, {0x80000000 | LOG2E:#x}")
    k("s_waitcnt vmcnt(3)")
    for j in range(3):
        k(f"v_lshlrev_b32 v{20+j}, 16, v{20+j}")
    for j in range(3):
        k(f"v_mul_f32 v{24+j}, s21, v{20+j}")
    for j in range(3):
        k(f"v_exp_f32 v{24+j}, v{24+j}")
    k("s_nop 0")
    for j in range(3):
        k(f"v_add_f32 v{24+j}, 1.0, v{24+j}")
    for j in range(3):
        k(f"v_rcp_f32 v{24+j}, v{24+j}")
    k("s_nop 0")
    for j in range(3):
        k(f"v_mul_f32 v{24+j}, v{24+j}, v{20+j}")
    k("v_cvt_pk_bf16_f32 v20, v24, v25")
    k("v_cvt_pk_bf16_f32 v21, v26, v26")
    unpack(k, 24, 25, 20)
    k("v_lshlrev_b32 v26, 16, v21")
    for j in range(3):
        k(f"s_waitcnt vmcnt({2-j})")
        for e in range(4):
            unpack(k, 40 + 2 * e, 41 + 2 * e, 8 + 4 * j + e)
        sp = 24 + (j & 2)
        sel = j & 1
        for e in range(4):
            if j == 0:
                k(f"v_pk_mul_f32 {v(32+2*e,2)}, {v(40+2*e,2)}, {v(sp,2)} op_sel:[0,{sel}] op_sel_hi:[1,{sel}]")
            else:
                k(f"v_pk_fma_f32 {v(32+2*e,2)}, {v(40+2*e,2)}, {v(sp,2)}, {v(32+2*e,2)} op_sel:[0,{sel},0] op_sel_hi:[1,{sel},1]")
    k("v_and_b32 v6, 63, v0")
    k("v_lshrrev_b32 v7, 4, v6")
    for e in range(4):
        k(f"v_permlane16_swap_b32 v{32+2*e}, v{33+2*e}")
    for e in range(4):
        k(f"v_add_f32 v{32+2*e}, v{32+2*e}, v{33+2*e}")
    k("v_lshl_add_u32 v7, v2, 3, v7")
    k("v_permlane32_swap_b32 v32, v34")
    k("v_permlane32_swap_b32 v36, v38")
    k("v_add_f32 v32, v32, v34")
    k("v_add_f32 v36, v36, v38")
    k("v_and_b32 v5, 8, v0")
    dpp_add(k, 32, "row_ror:8")
    dpp_add(k, 36, "row_ror:8")
    k("v_cmp_ne_u32 vcc, 0, v5")
    k("v_lshrrev_b32 v5, 1, v5")
    k("v_add_u32 v7, v7, v5")
    k("v_cndmask_b32 v32, v32, v36, vcc")
    k("v_and_b32 v5, 0xc0, v0")
    k("v_add_lshl_u32 v7, v7, v5, 2")
    k("ds_write_b32 v7, v32")
    k("v_lshlrev_b32 v6, 2, v6")
    k("s_mul_i32 s20, s18, 10752")
    k("s_lshl_b32 s19, s19, 8")
    k("s_add_u32 s20, s20, s19")
    k("v_lshlrev_b32 v5, 10, v5")
    k("s_waitcnt lgkmcnt(0)")
    k("s_barrier")
    k("ds_read2st64_b32 v[8:9], v6 offset0:0 offset1:1")
    k("ds_read2st64_b32 v[10:11], v6 offset0:2 offset1:3")
    k("v_add_u32 v6, v6, v5")
    k("v_add_u32 v6, s20, v6")
    k("s_waitcnt lgkmcnt(0)")
    k("v_pk_add_f32 v[8:9], v[8:9], v[10:11]")
    k("v_add_f32 v8, v8, v9")
    k("buffer_store_dword v8, v6, s[32:35], 0 offen")
    k("s_branch k0_fin")

    k.label("k0_stat_body")
    if OPT["pf"]:
        k("s_cmp_ge_u32 s2, 232")
        k("s_cbranch_scc1 k0_nopf")
        k("s_getpc_b64 s[20:21]")
        k.label("k0_pfpc")
        k("s_add_u32 s20, s20, k1_conv_kernel-k0_pfpc")
        k("s_addc_u32 s21, s21, 0")
        k("v_lshlrev_b32 v44, 4, v0")
        k("v_mov_b32 v45, s21")
        k("v_add_co_u32 v44, vcc, s20, v44")
        k("s_nop 1")
        k("v_addc_co_u32 v45, vcc, 0, v45, vcc")
        k("s_mov_b64 s[22:23], 4096")
        k("s_mov_b32 s18, (code_end-k1_conv_kernel)>>12")
        k.label("k0_pfloop")
        k("global_load_dwordx4 v[48:51], v[44:45], off")
        k("v_lshl_add_u64 v[44:45], v[44:45], 0, s[22:23]")
        k("s_sub_u32 s18, s18, 1")
        k("s_cmp_lg_u32 s18, 0")
        k("s_cbranch_scc1 k0_pfloop")
        k.label("k0_nopf")
    k.srd(32, 16, 16384, WS_STAT)
    k("s_mov_b32 s20, 0x3f803f80")
    k("v_mov_b32 v4, 0")
    k("v_mov_b32 v5, 0")
    k("v_lshlrev_b32 v1, 2, v1")
    k("v_lshl_add_u32 v1, v2, 13, v1")
    k("s_waitcnt vmcnt(0)")
    for r in range(8, 36):
        k(f"v_dot2c_f32_bf16 v4, s20, v{r}")
        k(f"v_dot2c_f32_bf16 v5, v{r}, v{r}")
    k("s_nop 1")
    reduce8(k, 4, 5)
    k(f"v_mul_f32 v4, 0x3b124925, v4")
    k(f"v_mul_f32 v5, 0x3b124925, v5")
    k("v_fma_f32 v5, -v4, v4, v5")
    k("v_max_f32 v5, 0, v5")
    k("v_add_f32 v5, 0x3727c5ac, v5")
    k("v_rsq_f32 v5, v5")
    k("v_cmp_eq_u32 vcc, 0, v2")
    k("v_mul_f32 v4, -v4, v5")
    k("s_nop 0")
    k("v_cndmask_b32 v4, v4, v5, vcc")
    k("buffer_store_dword v4, v1, s[32:35], 0 offen")
    k("s_branch k0_fin")

    k.label("k0_tile_body")
    KU, VU, SU, AC, O0, O1 = 40, 62, 78, 86, 104, 108
    k.srd(40, 16, SD, WS_KVT)
    k.srd(44, 16, SD, WS_QP)
    k("v_and_b32 v29, 7, v8")
    k("v_xor_b32 v30, v9, v29")
    k("v_lshlrev_b32 v30, 4, v30")
    k("v_lshl_add_u32 v30, v8, 8, v30")
    k("v_lshlrev_b32 v31, 1, v9")
    k("v_xor_b32 v31, v31, v29")
    k("v_lshlrev_b32 v31, 4, v31")
    k("v_lshl_add_u32 v31, v8, 8, v31")
    k("v_xor_b32 v29, 16, v31")
    k("v_bfe_u32 v2, v0, 4, 3")
    k("v_xor_b32 v2, v0, v2")
    k("v_lshlrev_b32 v2, 4, v2")
    k("v_lshrrev_b32 v1, 3, v0")
    k("v_and_b32 v3, 7, v0")
    k("v_lshlrev_b32 v3, 4, v3")
    k("v_lshl_add_u32 v1, v1, 12, v3")
    k("v_lshrrev_b32 v3, 4, v0")
    k("v_and_b32 v102, 15, v0")
    k("v_lshlrev_b32 v102, 4, v102")
    k("v_lshl_add_u32 v3, v3, 13, v102")
    k("s_lshl_b32 s18, s18, 18")
    k("s_lshl_b32 s20, s19, 7")
    k("s_add_u32 s20, s20, s18")
    k("s_add_u32 s21, s20, 0x20000")
    k("s_lshl_b32 s22, s19, 8")
    k("s_add_u32 s22, s22, s18")
    k("s_add_u32 s23, s22, 0x20000")
    k("s_waitcnt vmcnt(16)")
    st.mark()
    for j in range(11):
        unpack(k, KU + 2 * j, KU + 2 * j + 1, KR + j)
    unpack(k, SU + 0, SU + 2, 4)
    unpack(k, SU + 4, SU + 6, 5)
    unpack(k, SU + 1, SU + 3, 6)
    unpack(k, SU + 5, SU + 7, 7)
    for tap in range(4):
        for r in range(8):
            src = KU + 2 * (r + 3 - tap)
            if tap == 0:
                k(f"v_pk_mul_f32 {v(AC+2*r,2)}, {v(src,2)}, {v(SU,2)}")
            else:
                k(f"v_pk_fma_f32 {v(AC+2*r,2)}, {v(src,2)}, {v(SU+2*tap,2)}, {v(AC+2*r,2)}")
    k("s_waitcnt vmcnt(8)")
    for j in range(8):
        unpack(k, VU + 2 * j, VU + 2 * j + 1, VR + j)
    for r in range(8):
        k(f"v_pk_mul_f32 {v(AC+2*r,2)}, {v(AC+2*r,2)}, {v(VU+2*r,2)}")
    for h, O in ((0, O0), (1, O1)):
        for e in range(4):
            k(f"v_cvt_pk_bf16_f32 v{O+e}, v{AC+2*(7-2*e)+h}, v{AC+2*(6-2*e)+h}")
        k(f"ds_write_b128 v30, {v(O,4)} offset:{128*h}")
    k("s_waitcnt vmcnt(0)")
    k(f"ds_write_b128 v31, {v(QR,4)} offset:8192")
    k(f"ds_write_b128 v29, {v(QR+4,4)} offset:8192")
    k("s_waitcnt lgkmcnt(0)")
    k("s_barrier")
    for i in range(4):
        k(f"ds_read_b128 {v(40+4*i,4)}, v2 offset:{4096*i}")
    for i in range(4):
        k(f"s_waitcnt lgkmcnt({3-i})")
        if i < 2:
            k(f"buffer_store_dwordx4 {v(40+4*i,4)}, v1, s[40:43], s{20+i} offen")
        else:
            k(f"buffer_store_dwordx4 {v(40+4*i,4)}, v3, s[44:47], s{20+i} offen")
    k.label("k0_fin")
    st.n = 2
    st.flush(16, 48, 112, 0)
    k.label("k0_end")
    k("s_endpgm")
    return k, dict(vgpr=120, lds=16384, grid=498, block=256)


def gen_k1():
    k = Asm()
    st = Stamps(k, 1, 64)
    KVB, KVS = 0, 4608
    HB, HS = 9216, 4160
    RED = HB + 4 * HS
    LDS = RED + 32768
    k.label("k1_conv_kernel")
    st.mark()
    k("s_cmp_ge_u32 s2, 224")
    k("s_cbranch_scc1 k1_end")
    k("s_load_dwordx4 s[4:7], s[0:1], 32")
    k("s_load_dwordx2 s[8:9], s[0:1], 112")
    k("s_and_b32 s3, s2, 7")
    k("s_mul_i32 s3, s3, 28")
    k("s_lshr_b32 s10, s2, 3")
    k("s_add_u32 s10, s10, s3")
    k("v_lshrrev_b32 v1, 6, v0")
    k("v_and_b32 v2, 63, v0")
    k("v_readfirstlane_b32 s11, v1")
    k("v_lshlrev_b32 v3, 4, v2")
    k("v_lshlrev_b32 v4, 4, v0")
    k("v_add_u32 v5, -4, v4")
    k("s_lshl_b32 s12, s10, 13")
    k("s_add_u32 s13, s12, 4096")
    k("s_lshl_b32 s14, s11, 11")
    k("s_add_u32 s14, s14, s12")
    k("s_lshr_b32 s15, s11, 1")
    k("s_and_b32 s16, s11, 1")
    k("s_mul_i32 s17, s15, 4608")
    k("s_lshl_b32 s18, s16, 11")
    k("s_add_u32 s18, s18, s17")
    k("s_add_u32 m0, s18, 512")
    k("v_and_b32 v6, 7, v2")
    k("v_lshrrev_b32 v7, 3, v2")
    k("v_mul_u32_u24 v6, 10752, v6")
    k("v_mul_u32_u24 v7, 1792, v7")
    k("s_lshl_b32 s19, s10, 3")
    k("v_add3_u32 v6, v6, v7, s19")
    k("s_lshl_b32 s19, s10, 2")
    k("s_waitcnt lgkmcnt(0)")
    k("s_load_dword s20, s[6:7], s19")
    k.srd(24, 8, SD, WS_KVT)
    k.srd(28, 4, SD)
    k("buffer_load_dwordx4 v3, s[24:27], s14 offen lds")
    k("buffer_load_dwordx4 v3, s[24:27], s14 offen offset:1024 lds")
    k(f"buffer_load_dwordx4 v[64:67], v4, s[28:31], s12 offen{NT()}")
    k(f"buffer_load_dword v72, v5, s[28:31], s12 offen{NT()}")
    k(f"buffer_load_dwordx4 v[68:71], v4, s[28:31], s13 offen{NT()}")
    k(f"buffer_load_dword v73, v5, s[28:31], s13 offen{NT()}")
    k.srd(32, 8, 5 * 10752, WS_MODP)
    k.srd(36, 8, SD, WS_QP)
    k.srd(40, 8, 16384, WS_STAT)
    k("buffer_load_dwordx2 v[8:9], v6, s[32:35], 0 offen")
    Q, R, M, QF, U = 192, 200, 208, 216, 232
    k("s_lshl_b32 s21, s11, 11")
    k("s_add_u32 s22, s21, 8192")
    for n in range(2):
        k(f"buffer_load_dwordx4 {v(Q+4*n,4)}, v3, s[36:39], s14 offen offset:{1024*n}")
        k(f"buffer_load_dwordx4 {v(R+4*n,4)}, v3, s[40:43], s21 offen offset:{1024*n}")
        k(f"buffer_load_dwordx4 {v(M+4*n,4)}, v3, s[40:43], s22 offen offset:{1024*n}")
    for i in range(4):
        k(f"v_mov_b32 v{12+i}, 0")
    k("v_lshrrev_b32 v10, 5, v0")
    k("v_mul_u32_u24 v10, 4096, v10")
    k("v_add_u32 v10, v10, v4")
    k("v_bfe_u32 v11, v0, 1, 2")
    k("v_mul_u32_u24 v11, 4160, v11")
    k("v_and_b32 v7, 16, v4")
    k(f"v_add_u32 v11, {HB}, v11")
    k("v_cmp_gt_u32 vcc, 64, v0")
    k("v_add_u32 v11, v11, v7")
    k("v_and_b32 v7, 15, v2")
    k("v_cndmask_b32 v10, v11, v10, vcc")
    k("ds_write_b128 v10, v[12:15]")
    k("v_lshrrev_b32 v10, 4, v2")
    k("v_and_b32 v11, 1, v2")
    k("v_xor_b32 v11, 1, v11")
    k("v_mul_u32_u24 v11, 4160, v11")
    k("v_lshrrev_b32 v16, 1, v7")
    k("v_lshl_add_u32 v16, v10, 2, v16")
    k("v_lshl_add_u32 v16, v16, 2, v11")
    k("s_mul_i32 s23, s15, 8320")
    k("s_lshl_b32 s44, s16, 8")
    k("s_add_u32 s23, s23, s44")
    k(f"s_add_u32 s23, s23, {HB + 4}")
    k("v_add_u32 v16, s23, v16")
    for i in range(1, 4):
        k(f"v_add_u32 v{16+i}, {1024*i}, v16")
    k("v_lshlrev_b32 v20, 1, v7")
    k("v_sub_u32 v20, v20, v10")
    k("s_sub_u32 s23, s17, s44")
    k(f"s_add_u32 s23, s23, {512 + 16 - 192}")
    k("v_lshl_add_u32 v20, v20, 4, s23")
    k("v_bfe_u32 v21, v2, 1, 2")
    k("v_xor_b32 v21, v21, v10")
    k("v_lshl_add_u32 v21, v7, 2, v21")
    k("s_lshl_b32 s23, s11, 13")
    k(f"s_add_u32 s23, s23, {RED}")
    k("v_lshl_add_u32 v21, v21, 4, s23")
    k("v_bfe_u32 v22, v2, 3, 2")
    k("v_xor_b32 v22, v22, v2")
    k(f"s_add_u32 s23, s21, {RED}")
    k("v_lshl_add_u32 v22, v22, 4, s23")
    k("v_xor_b32 v23, 1, v2")
    k("s_lshl_b32 s23, s11, 10")
    k("s_add_u32 s23, s23, 512")
    k("v_lshl_add_u32 v23, v23, 3, s23")
    k("v_lshrrev_b32 v24, 3, v2")
    k("v_mul_u32_u24 v24, 28672, v24")
    k("v_and_b32 v25, 0x70, v3")
    k("v_add_u32 v24, v24, v25")
    k(f"v_add_u32 v4, {HB + 32}, v4")
    k("s_waitcnt vmcnt(7)")
    st.mark()
    for ch in range(2):
        A0, P = 64 + 4 * ch, 72 + ch
        k(f"ds_write_b128 v4, {v(A0,4)} offset:{8320*ch}")
        for e in range(4):
            k(f"v_alignbit_b32 v{76+4*ch+e}, v{A0+e}, v{P if e == 0 else A0+e-1}, 16")
        k(f"ds_write_b128 v4, {v(76+4*ch,4)} offset:{8320*ch+4160}")
    k("s_waitcnt lgkmcnt(0)")
    k("s_barrier")
    st.mark()
    ACC = 32

    def reads(r):
        A, B = (64, 96) if r % 2 == 0 else (128, 160)
        out = []
        for q in range(8):
            o = 16 * r + 128 * (q & 1)
            out.append(f"ds_read_b128 {v(B+4*q,4)}, v20 offset:{512*q + 64*(3-r)}")
            out.append(f"ds_read2_b32 {v(A+4*q,2)}, v{16+(q>>1)} offset0:{o} offset1:{o+1}")
            out.append(f"ds_read2_b32 {v(A+4*q+2,2)}, v{16+(q>>1)} offset0:{o+2} offset1:{o+3}")
        return out
    for x in reads(0):
        k(x)
    k("s_waitcnt vmcnt(6)")
    reduce8(k, 8, 9)
    k("v_cvt_pk_bf16_f32 v8, v8, v9")
    k("s_nop 0")
    for i in range(6):
        k(f"v_readlane_b32 s{44+i}, v8, {8*i}")
    k("s_nop 1")
    k("v_lshlrev_b32 v10, 16, s45")
    k("s_and_b32 s50, s45, 0xffff0000")
    k("v_add_f32 v10, 1.0, v10")
    k("v_add_f32 v11, 1.0, s50")
    k("v_cvt_pk_bf16_f32 v10, v10, v11")
    unpack(k, 26, 27, 10)
    k("s_lshl_b32 s50, s46, 16")
    k("s_and_b32 s51, s46, 0xffff0000")
    k("v_pk_mul_f32 v[26:27], v[26:27], s[50:51]")
    k("v_lshlrev_b32 v28, 16, s44")
    k("s_and_b32 s52, s44, 0xffff0000")
    k("v_mov_b32 v29, s52")
    k("v_pk_mul_f32 v[28:29], v[28:29], s[50:51]")
    k("v_lshlrev_b32 v30, 16, s20")
    k("s_and_b32 s52, s20, 0xffff0000")
    k("v_mov_b32 v31, s52")
    k("v_lshlrev_b32 v10, 16, s48")
    k("s_and_b32 s52, s48, 0xffff0000")
    k("v_add_f32 v10, 1.0, v10")
    k("v_add_f32 v11, 1.0, s52")
    k("v_cvt_pk_bf16_f32 v12, v10, v10")
    k("v_cvt_pk_bf16_f32 v14, v11, v11")
    k("s_pack_ll_b32_b16 s52, s47, s47")
    k("s_pack_hh_b32_b16 s53, s47, s47")
    k("v_mov_b32 v13, s52")
    k("v_mov_b32 v15, s53")
    k("v_lshlrev_b32 v10, 16, s49")
    k("s_and_b32 s52, s49, 0xffff0000")
    k("v_mov_b32 v11, s52")
    k.srd(56, 8, 8192, WS_TAB)
    k("v_lshlrev_b32 v9, 13, v0")
    k("s_lshl_b32 s52, s10, 4")
    k("s_lshl_b32 s53, s10, 3")
    k("s_add_u32 s53, s53, 4096")
    k("buffer_store_dwordx4 v[12:15], v9, s[56:59], s52 offen")
    k("buffer_store_dwordx2 v[10:11], v9, s[56:59], s53 offen")
    k.srd(60, 8, SD, WS_X1)
    k("s_mul_i32 s54, s11, 458752")
    k("s_lshl_b32 s55, s10, 7")
    k("s_add_u32 s54, s54, s55")
    k("s_add_u32 s55, s54, 229376")

    side = ["s_waitcnt vmcnt(2)"]
    for n in range(2):
        for e in range(4):
            side.append(f"v_lshlrev_b32 v{QF+8*n+e}, 16, v{Q+4*n+e}")
            side.append(f"v_and_b32 v{QF+8*n+4+e}, 0xffff0000, v{Q+4*n+e}")
    for n in range(2):
        for ch in range(2):
            for e in (0, 2):
                d = U + 8 * n + 4 * ch + e
                side.append(f"v_pk_fma_f32 {v(d,2)}, {v(QF+8*n+4*ch+e,2)}, {v(R+4*n+e,2)}, {v(M+4*n+e,2)}")
    for n in range(2):
        for ch in range(2):
            for e in (0, 2):
                d = U + 8 * n + 4 * ch + e
                side.append(f"v_fma_f32 v{d}, v{d}, v{26+ch}, v{28+ch}\nv_fma_f32 v{d+1}, v{d+1}, v{26+ch}, v{28+ch}")
    for r in range(4):
        A, B = (64, 96) if r % 2 == 0 else (128, 160)
        k("s_waitcnt lgkmcnt(0)")
        fill = reads(r + 1) if r < 3 else list(side)
        seen = set()
        for q in range(8):
            for d in range(8 - q):
                n = q + d
                c = "0" if (r == 0 and n not in seen) else v(ACC + 4 * n, 4)
                seen.add(n)
                k(f"v_mfma_f32_16x16x32_bf16 {v(ACC+4*n,4)}, {v(A+4*q,4)}, {v(B+4*d,4)}, {c}")
                if fill:
                    k(fill.pop(0))
        assert not fill
    st.mark()
    KV = 64
    for n in range(2):
        for ch in range(2):
            k(f"ds_read_b64 {v(KV+4*n+2*ch,2)}, v23 offset:{KVS*ch+512*n}")
    for n in range(8):
        if n == 7:
            k("s_nop 0")
        k(f"ds_write_b128 v21, {v(ACC+4*n,4)} offset:{1024*n}")
    KF = 72
    k("s_waitcnt lgkmcnt(8)")
    for n in range(2):
        for ch in range(2):
            src, d = KV + 4 * n + 2 * ch, KF + 8 * n + 4 * ch
            unpack(k, d + 3, d + 2, src)
            unpack(k, d + 1, d + 0, src + 1)
    k("s_waitcnt lgkmcnt(0)")
    k("s_barrier")
    Y = 96
    for n in range(2):
        for w in range(4):
            k(f"ds_read_b128 {v(Y+16*n+4*w,4)}, v22 offset:{8192*w+1024*n}")
    for n in range(2):
        for ch in range(2):
            k(f"s_waitcnt lgkmcnt({6-4*n-2*ch})")
            y0 = Y + 16 * n + 8 * ch
            for e in (0, 2):
                k(f"v_pk_add_f32 {v(y0+e,2)}, {v(y0+e,2)}, {v(y0+4+e,2)}")
            for e in (0, 2):
                k(f"v_pk_fma_f32 {v(y0+e,2)}, {v(KF+8*n+4*ch+e,2)}, v[30:31], {v(y0+e,2)} op_sel:[0,{ch},0] op_sel_hi:[1,{ch},1]")
            for e in (0, 2):
                k(f"v_pk_fma_f32 {v(y0+e,2)}, {v(U+8*n+4*ch+e,2)}, {v(y0+e,2)}, {v(QF+8*n+4*ch+e,2)}")
        for e in range(4):
            k(f"v_cvt_pk_bf16_f32 v{128+4*n+e}, v{Y+16*n+e}, v{Y+16*n+8+e}")
        k(f"buffer_store_dwordx4 {v(128+4*n,4)}, v24, s[60:63], s{54+n} offen")
    st.flush(8, 56, 10, 0)
    k.label("k1_end")
    k("s_endpgm")
    return k, dict(vgpr=248, lds=LDS, grid=224, block=256)


def gen_k2():
    k = Asm()
    st = Stamps(k, 2, 64)
    NSLOT = 9
    X, TB, MK, DG, NA, ACC = 16, 128, 156, 164, 172, 172
    k.label("k2_gemm1_kernel")
    st.mark()
    k("s_cmp_ge_u32 s2, 224")
    k("s_cbranch_scc1 k2_end")
    k("s_load_dwordx4 s[4:7], s[0:1], 56")
    k("s_load_dwordx2 s[8:9], s[0:1], 112")
    k("v_lshrrev_b32 v1, 6, v0")
    k("v_and_b32 v2, 63, v0")
    k("v_readfirstlane_b32 s11, v1")
    k("s_and_b32 s3, s2, 7")
    k("s_lshr_b32 s10, s2, 3")
    k("s_and_b32 s12, s10, 3")
    k("s_and_b32 s13, s3, 6")
    k("s_lshl1_add_u32 s12, s13, s12")
    k("s_and_b32 s13, s3, 1")
    k("s_mul_i32 s13, s13, 7")
    k("s_lshr_b32 s10, s10, 2")
    k("s_add_u32 s13, s13, s10")
    k("s_lshl2_add_u32 s14, s12, s11")
    k("s_mul_i32 s15, s14, 28672")
    k("v_and_b32 v3, 31, v2")
    k("v_lshrrev_b32 v4, 5, v2")
    k("v_lshlrev_b32 v5, 9, v4")
    k("v_lshl_add_u32 v5, v3, 2, v5")
    k("v_and_b32 v6, 0x13, v3")
    k("v_bfe_u32 v7, v3, 2, 1")
    k("v_lshl_or_b32 v6, v7, 3, v6")
    k("v_bfe_u32 v7, v3, 3, 1")
    k("v_lshl_or_b32 v6, v7, 2, v6")
    k("v_lshlrev_b32 v7, 3, v6")
    k("s_waitcnt lgkmcnt(0)")
    k.srd(24, 8, SD, WS_X1)
    k.srd(28, 8, 3584, WS_TAB)
    k("s_cmp_ge_u32 s11, 2")
    k("s_cselect_b32 s32, s6, s4")
    k("s_cselect_b32 s33, s7, s5")
    k(f"s_mov_b32 s34, {448*3584}")
    k("s_mov_b32 s35, 0x20000")
    for B in range(14):
        k(f"buffer_load_dwordx2 {v(TB+2*B,2)}, v7, s[28:31], 0 offen offset:{256*B}")
    for kk in range(28):
        if kk and kk % 4 == 0:
            k("s_add_u32 s15, s15, 4096")
        for j in range(4):
            k(f"buffer_load_dword v{X+4*kk+j}, v5, s[24:27], s15 offen offset:{1024*(kk%4)+128*j}")
    k("v_lshrrev_b32 v8, 3, v2")
    k("v_bfe_u32 v9, v2, 4, 1")
    k("s_and_b32 s16, s11, 2")
    k("v_or_b32 v9, s16, v9")
    k("v_lshlrev_b32 v9, 1, v9")
    k("v_xor_b32 v9, v9, v2")
    k("v_and_b32 v9, 7, v9")
    k("v_mul_u32_u24 v8, 3584, v8")
    k("v_lshl_add_u32 v8, v9, 4, v8")
    k("s_and_b32 s16, s11, 1")
    k("s_mul_i32 s16, s16, 114688")
    k("s_lshl_b32 s17, s13, 8")
    k("s_add_u32 s16, s16, s17")
    k("v_add_u32 v8, s16, v8")
    k("s_lshl_b32 s18, s11, 12")

    def dma(stage):
        grp, sk = divmod(stage, 7)
        out = []
        for j in range(4):
            out.append([f"s_add_u32 m0, s18, {(stage % NSLOT)*16384 + j*1024}",
                        f"s_mov_b32 s19, {(64*sk+8*j)*3584 + grp*128}",
                        "buffer_load_dwordx4 v8, s[32:35], s19 offen lds"])
        return out
    k("v_lshlrev_b32 v9, 3, v4")
    k("v_sub_u32 v9, v6, v9")
    k("v_mov_b32 v10, 0xffff")
    k("v_and_b32 v11, 1, v9")
    k("v_lshlrev_b32 v11, 4, v11")
    k("v_lshlrev_b32 v10, v11, v10")
    k("v_ashrrev_i32 v9, 1, v9")
    for u in range(2):
        for j in range(4):
            k(f"v_cmp_eq_u32 s[{36+2*(4*u+j)}:{37+2*(4*u+j)}], {8*u+j}, v9")
    k("s_nop 0")
    for u in range(2):
        for j in range(4):
            k(f"v_cndmask_b32 v{MK+4*u+j}, 0, v10, s[{36+2*(4*u+j)}:{37+2*(4*u+j)}]")
    k("v_bfe_u32 v9, v2, 4, 1")
    k("v_bfe_u32 v10, v2, 2, 2")
    k("v_lshl_add_u32 v10, v4, 3, v10")
    k("v_lshlrev_b32 v10, 7, v10")
    k("v_lshl_add_u32 v10, v9, 13, v10")
    k("v_and_b32 v11, 3, v2")
    k("v_lshl_add_u32 v10, v11, 3, v10")
    k("v_bfe_u32 v11, v2, 3, 2")
    k("v_lshl_add_u32 v236, v11, 5, v10")
    for t in range(1, 4):
        k(f"v_xor_b32 v{236+t}, {32*t}, v236")
    k("s_mov_b32 s20, 0x3f803f80")
    k("v_mov_b32 v12, 0")
    k("v_mov_b32 v13, 0")
    pend = [d for sidx in range(NSLOT - 1) for d in dma(sidx)]
    issued = 0
    for kk in range(28):
        out_x = 4 * (27 - kk)
        if out_x + issued <= 62 or kk == 0:
            k(f"s_waitcnt vmcnt({min(62, out_x + issued)})")
        if kk == 12:
            st.mark()
        for j in range(4):
            k(f"v_dot2c_f32_bf16 v12, s20, v{X+4*kk+j}")
            k(f"v_dot2c_f32_bf16 v13, v{X+4*kk+j}, v{X+4*kk+j}")
        while pend and kk >= 12 and out_x + issued < 60:
            for x in pend.pop(0):
                k(x)
            issued += 1
    assert not pend
    st.mark()
    k("s_nop 1")
    k("v_mov_b32 v14, v12")
    k("v_mov_b32 v15, v13")
    k("s_nop 1")
    k("v_permlane32_swap_b32 v12, v14")
    k("v_permlane32_swap_b32 v13, v15")
    k("v_add_f32 v12, v12, v14")
    k("v_add_f32 v13, v13, v15")
    k("v_mul_f32 v12, 0xbb124925, v12")
    k("v_mul_f32 v13, 0x3b124925, v13")
    k("v_fma_f32 v13, -v12, v12, v13")
    k("v_max_f32 v13, 0, v13")
    k("v_add_f32 v13, 0x3727c5ac, v13")
    k("v_rcp_f32 v240, v13")
    k("v_sqrt_f32 v13, v13")
    k("v_cmp_eq_u32 vcc, 0, v4")
    k("v_cvt_pk_bf16_f32 v14, v12, v13")
    unpack(k, 10, 11, 14)
    k("v_sub_f32 v14, v12, v10")
    k("v_sub_f32 v15, v13, v11")
    k("v_cvt_pk_bf16_f32 v14, v10, v14")
    k("v_cvt_pk_bf16_f32 v15, v11, v15")
    k("v_cndmask_b32 v14, 0, v14, vcc")
    k("v_cndmask_b32 v15, 0, v15, vcc")

    def diag(B, u):
        for j in range(4):
            k(f"v_and_b32 v{DG+4*u+j}, v{TB+2*B}, v{MK+4*u+j}")

    def cvt(B, half):
        acc = NA + 16 * (B % 3)
        for j in range(4 * half, 4 * half + 4):
            k(f"v_cvt_pk_bf16_f32 v{X+8*B+j}, v{acc+2*j}, v{acc+2*j+1}")
    for B in range(16):
        acc = NA + 16 * (B % 3)
        if B < 14:
            diag(B, 0)
            if B >= 2:
                cvt(B - 2, 0)
            k(f"v_mfma_f32_32x32x8_bf16 {v(acc,16)}, {v(TB+2*B,2)}, v[14:15], 0")
            diag(B, 1)
            k(f"v_mfma_f32_32x32x16_bf16 {v(acc,16)}, {v(DG,4)}, {v(X+8*B,4)}, {v(acc,16)}")
            if B >= 2:
                cvt(B - 2, 1)
            else:
                k("s_nop 0")
            k(f"v_mfma_f32_32x32x16_bf16 {v(acc,16)}, {v(DG+4,4)}, {v(X+8*B+4,4)}, {v(acc,16)}")
        else:
            if B == 15:
                k("s_nop 3")
            cvt(B - 2, 0)
            cvt(B - 2, 1)
    st.mark()
    k.srd(36, 8, H_BYTES, WS_H)
    k("s_mul_i32 s21, s14, 112")
    k("s_lshl3_add_u32 s21, s13, s21")
    k("s_lshl_b32 s21, s21, 10")
    k("v_lshlrev_b32 v3, 4, v2")
    AF = 128
    BASE = 244
    vm = [("dma", sidx) for sidx in range(NSLOT - 1) for _ in range(4)]

    def enter_stage(sidx):
        last = max(i for i, e in enumerate(vm) if e == ("dma", sidx))
        k(f"s_waitcnt vmcnt({len(vm) - 1 - last})")
        k("s_barrier")
        for t in range(4):
            k(f"v_add_u32 v{BASE+t}, {(sidx % NSLOT)*16384}, v{236+t}")

    def areads(step):
        kk = step % 4
        buf = AF + 16 * (step % 2)
        return [f"ds_read_b64_tr_b16 {v(buf+4*t+2*u,2)}, v{BASE+t} offset:{2048*kk+512*u}" for t in range(4) for u in range(2)]
    enter_stage(0)
    for x in areads(0):
        k(x)
    for step in range(56):
        grp, kx = divmod(step, 28)
        buf = AF + 16 * (step % 2)
        k("s_waitcnt lgkmcnt(0)")
        fill = []
        if step + 1 < 56:
            if (step + 1) % 4 == 0:
                enter_stage((step + 1) // 4)
            fill = [[x] for x in areads(step + 1)]
        nxt = step // 4 + NSLOT - 1
        extra = []
        if nxt < 14:
            extra = dma(nxt)[step % 4]
            vm.append(("dma", nxt))
        for t in range(4):
            c = "0" if kx == 0 else v(ACC + 16 * t, 16)
            k(f"v_mfma_f32_32x32x16_bf16 {v(ACC+16*t,16)}, {v(buf+4*t,4)}, {v(X+4*kx,4)}, {c}")
            for _ in range(3 if t < 2 else 2):
                if fill:
                    for x in fill.pop(0):
                        k(x)
            if t == 3:
                for x in extra:
                    k(x)
        if kx == 27:
            k("s_nop 8")
            for t in range(4):
                T = ACC + 16 * t
                for e in range(0, 8, 2):
                    k(f"v_pk_mul_f32 {v(T+8+e,2)}, {v(T+8+e,2)}, v[240:241] op_sel_hi:[1,0]")
                for e in range(8):
                    k(f"v_max_f32 v{T+e}, 0, v{T+e}")
                for e in range(0, 8, 2):
                    k(f"v_pk_mul_f32 {v(T+e,2)}, {v(T+e,2)}, {v(T+8+e,2)}")
                O = 160 + 4 * (t % 2)
                for e in range(4):
                    k(f"v_cvt_pk_bf16_f32 v{O+e}, v{T+2*e}, v{T+2*e+1}")
                k(f"buffer_store_dwordx4 {v(O,4)}, v3, s[36:39], s21 offen offset:{1024*t}")
                vm.append(("st", 0))
            if grp == 0:
                k("s_add_u32 s21, s21, 4096")
                st.mark()
    st.flush(8, 56, 10, 0)
    k.label("k2_end")
    k("s_endpgm")
    return k, dict(vgpr=248, lds=NSLOT * 16384, grid=224, block=256)


def gen_k3():
    k = Asm()
    st = Stamps(k, 3, 64)
    D, NS = 13, 14
    RING = NS * 2048
    HR, ACC, AF, XR, GB = 16, 128, 192, 208, 216
    k.label("k3_gemm2_kernel")
    st.mark()
    k("s_cmp_ge_u32 s2, 224")
    k("s_cbranch_scc1 k3_end")
    k("s_load_dwordx2 s[4:5], s[0:1], 72")
    k("s_load_dwordx2 s[6:7], s[0:1], 96")
    k("s_load_dwordx2 s[8:9], s[0:1], 112")
    k("v_lshrrev_b32 v1, 6, v0")
    k("v_and_b32 v2, 63, v0")
    k("v_readfirstlane_b32 s11, v1")
    k("s_and_b32 s3, s2, 7")
    k("s_lshr_b32 s10, s2, 3")
    k("s_and_b32 s12, s10, 3")
    k("s_lshl2_add_u32 s12, s3, s12")
    k("s_lshr_b32 s13, s10, 2")
    k("s_lshr_b32 s14, s11, 1")
    k("s_lshl1_add_u32 s14, s12, s14")
    k("s_xor_b32 s15, s14, 1")
    k("s_mul_i32 s16, s11, 28672")
    k("s_mul_i32 s17, s14, 114688")
    k("s_add_u32 s17, s17, s16")
    k("s_mul_i32 s18, s15, 114688")
    k("s_add_u32 s18, s18, s16")
    k("v_lshlrev_b32 v3, 4, v2")
    k("v_add_u32 v4, s17, v3")
    k("v_add_u32 v5, s18, v3")
    k("v_lshrrev_b32 v6, 3, v2")
    k("v_bfe_u32 v7, v2, 4, 1")
    k("v_lshlrev_b32 v7, 2, v7")
    k("v_xor_b32 v7, v7, v2")
    k("v_and_b32 v7, 7, v7")
    k("v_mul_u32_u24 v6, 896, v6")
    k("v_lshl_add_u32 v6, v7, 4, v6")
    k("s_mul_i32 s17, s11, 401408")
    k("s_lshl_b32 s18, s13, 7")
    k("s_add_u32 s17, s17, s18")
    k("v_add_u32 v6, s17, v6")
    k("s_waitcnt lgkmcnt(0)")
    k.srd(24, 4, 1792 * 896)
    k.srd(28, 8, H_BYTES, WS_H)
    vm = []

    def loads(kk):
        out = []
        for u in range(2):
            out.append([f"s_add_u32 m0, s16, {(kk % NS)*2048 + 1024*u}",
                        f"s_mov_b32 s19, {(16*kk+8*u)*896}",
                        "buffer_load_dwordx4 v6, s[24:27], s19 offen lds"])
        pre = [f"s_movk_i32 s20, {4096*(kk//4)}"] if kk % 4 == 0 else []
        out.append(pre + [f"buffer_load_dwordx4 {v(HR+8*(kk%NS),4)}, v4, s[28:31], s20 offen offset:{1024*(kk%4)}"])
        out.append([f"buffer_load_dwordx4 {v(HR+8*(kk%NS)+4,4)}, v5, s[28:31], s20 offen offset:{1024*(kk%4)}"])
        vm.extend([kk] * 4)
        return out
    for kk in range(D):
        for grp in loads(kk):
            for x in grp:
                k(x)
    k("v_lshrrev_b32 v8, 5, v2")
    k("v_bfe_u32 v9, v2, 2, 2")
    k("v_lshl_add_u32 v9, v8, 2, v9")
    k("v_lshlrev_b32 v9, 7, v9")
    k("v_and_b32 v10, 3, v2")
    k("v_lshl_add_u32 v9, v10, 3, v9")
    k("v_bfe_u32 v10, v2, 4, 1")
    k("v_lshl_add_u32 v9, v10, 5, v9")
    k("v_bfe_u32 v10, v2, 3, 1")
    k("s_and_b32 s21, s11, 1")
    k("v_xor_b32 v10, s21, v10")
    k("v_lshl_add_u32 v9, v10, 6, v9")
    k("v_xor_b32 v10, 64, v9")
    k("v_add_u32 v9, s16, v9")
    k("v_add_u32 v10, s16, v10")
    k("v_add_u32 v11, s16, v3")
    for j in range(1, 4):
        k(f"s_xor_b32 s22, s11, {j}")
        k("s_mul_i32 s22, s22, 28672")
        k(f"v_add_u32 v{11+j}, s22, v3")
    k.srd(32, 8, SD, WS_X1)
    k.srd(36, 8, 1792, WS_GBF)
    k.srd(40, 6, SD)
    k("s_lshl1_add_u32 s21, s13, s21")
    k("v_and_b32 v1, 31, v2")
    k("v_lshlrev_b32 v15, 8, v8")
    k("v_lshl_add_u32 v15, v1, 2, v15")
    k("s_mul_i32 s22, s14, 28672")
    k("s_lshl_b32 s23, s21, 11")
    k("s_add_u32 s23, s23, s22")
    k("v_lshlrev_b32 v7, 4, v8")
    k("s_lshl_b32 s44, s21, 7")
    k("v_mul_u32_u24 v1, 896, v1")
    k("v_add_u32 v1, v1, v7")
    k("s_lshl_b32 s45, s21, 6")
    k("s_add_u32 s45, s45, s22")

    def areads(kk):
        buf = AF + 8 * (kk % 2)
        return [f"ds_read_b64_tr_b16 {v(buf+4*dt+2*u,2)}, v{9+dt} offset:{2048*(kk%NS)+1024*u}" for dt in range(2) for u in range(2)]

    def wait_for(kk):
        last = max(i for i, e in enumerate(vm) if e == kk)
        k(f"s_waitcnt vmcnt({len(vm)-1-last})")
    wait_for(0)
    st.mark()
    for x in areads(0):
        k(x)
    for kk in range(28):
        buf = AF + 8 * (kk % 2)
        if kk + 1 < 28:
            wait_for(kk + 1)
        k("s_waitcnt lgkmcnt(0)")
        fill = [[x] for x in areads(kk + 1)] if kk + 1 < 28 else []
        ld = loads(kk + D) if kk + D < 28 else []
        if kk == 16:
            ld = []
            for r in range(4):
                ld.append([f"buffer_load_dword v{XR+2*r}, v15, s[32:35], s23 offen offset:{512*r}",
                           f"buffer_load_dword v{XR+2*r+1}, v15, s[32:35], s23 offen offset:{512*r+128}",
                           f"buffer_load_dwordx4 {v(GB+4*r,4)}, v7, s[36:39], s44 offen offset:{32*r}"])
                vm.extend(["ep"] * 3)
        for j in range(4):
            c = "0" if kk == 0 else v(ACC + 16 * j, 16)
            k(f"v_mfma_f32_32x32x16_bf16 {v(ACC+16*j,16)}, {v(buf+4*(j&1),4)}, {v(HR+8*(kk%NS)+4*(j>>1),4)}, {c}")
            if j < 2:
                for _ in range(2):
                    if fill:
                        k(fill.pop(0)[0])
            if ld:
                for x in ld.pop(0):
                    k(x)
    st.mark()
    k("s_nop 9")
    for j in range(1, 4):
        for r in range(4):
            k(f"ds_write_b128 v11, {v(ACC+16*j+4*r,4)} offset:{4096*(j-1)+1024*r}")
    XF = 16
    k("s_waitcnt vmcnt(0)")
    for r in range(8):
        unpack(k, XF + 2 * r, XF + 2 * r + 1, XR + r)
    k("s_waitcnt lgkmcnt(0)")
    k("s_barrier")
    for r in range(4):
        for j in range(1, 4):
            k(f"ds_read_b128 {v(ACC+16*j+4*r,4)}, v{11+j} offset:{4096*(j-1)+1024*r}")
    O = 40
    for r in range(4):
        k(f"s_waitcnt lgkmcnt({9-3*r})")
        for e in (0, 2):
            x = 4 * r + e
            k(f"v_pk_add_f32 {v(ACC+x,2)}, {v(ACC+x,2)}, {v(ACC+16+x,2)}")
            k(f"v_pk_add_f32 {v(ACC+32+x,2)}, {v(ACC+32+x,2)}, {v(ACC+48+x,2)}")
        for e in (0, 2):
            x = 4 * r + e
            k(f"v_pk_add_f32 {v(ACC+x,2)}, {v(ACC+x,2)}, {v(ACC+32+x,2)}")
        for e in (0, 2):
            x = 4 * r + e
            k(f"v_pk_fma_f32 {v(ACC+x,2)}, {v(ACC+x,2)}, {v(GB+x,2)}, {v(XF+x,2)}")
        for e in (0, 2):
            x = 4 * r + e
            k(f"v_cvt_pk_bf16_f32 v{O+x//2}, v{ACC+x}, v{ACC+x+1}")
        if r % 2 == 1:
            b = O + 2 * (r - 1)
            k("s_nop 1")
            k(f"v_permlane32_swap_b32 v{b}, v{b+2}")
            k(f"v_permlane32_swap_b32 v{b+1}, v{b+3}")
            k(f"buffer_store_dwordx4 {v(b,4)}, v1, s[40:43], s45 offen offset:{16*(r-1)}")
    st.flush(8, 56, 10, 0)
    k.label("k3_end")
    k("s_endpgm")
    return k, dict(vgpr=232, lds=4 * RING, grid=224, block=256)


def gen_empty():
    k = Asm()
    k.label("kx_empty_kernel")
    k("s_endpgm")
    return k, dict(vgpr=8, lds=0, grid=224, block=256)


def build(path):
    ref = open(f"cdna_kernels/{NAME}.s.ref").read().splitlines()
    head = [l for l in ref if l.startswith(";") and "@launch" not in l and "Override launch" not in l and "grid=ceil" not in l]
    ks = [gen_k0(), gen_k1(), gen_k2(), gen_k3()]
    launches = list(ks)
    if OPT["extra"]:
        e = gen_empty()
        ks.append(e)
        launches += [e] * OPT["extra"]
    out = "\n".join(head) + "\n"
    for k, m in launches:
        out += f"; @launch kernel={k.lines[0][:-1]} grid=({m['grid']},1,1) block=({m['block']},1,1) lds={m['lds']}\n"
    out += '.amdgcn_target "amdgcn-amd-amdhsa--gfx950"\n.text\n'
    nbad = 0
    for k, m in ks:
        nm = k.lines[0][:-1]
        for b in check_hazards(k.lines, nm):
            print("HAZARD", b)
            nbad += 1
        out += f".globl {nm}\n.p2align 8\n.type {nm},@function\n" + k.text()
    out += ".p2align 8\n.fill 1024, 4, 0xbf800000\ncode_end:\n    s_endpgm\n"
    out += '.section .rodata,"a"\n'
    for k, m in ks:
        nm = k.lines[0][:-1]
        acc = (m["vgpr"] + 3) // 4 * 4
        out += f""".p2align 6
.amdhsa_kernel {nm}
  .amdhsa_next_free_vgpr {m['vgpr'] + m.get('agpr', 0)}
  .amdhsa_next_free_sgpr 96
  .amdhsa_accum_offset {acc}
  .amdhsa_group_segment_fixed_size 0
  .amdhsa_kernarg_size 120
  .amdhsa_user_sgpr_count 2
  .amdhsa_user_sgpr_kernarg_segment_ptr 1
  .amdhsa_system_sgpr_workgroup_id_x 1
  .amdhsa_float_denorm_mode_32 3
.end_amdhsa_kernel
"""
    open(path, "w").write(out)
    print("wrote", path, len(out), "bytes; hazards:", nbad)


if __name__ == "__main__":
    path = sys.argv[1] if len(sys.argv) > 1 else f"cdna_kernels/{NAME}.s"
    for o in sys.argv[2:]:
        key, val = o.split("=")
        OPT[key] = int(val)
    build(path)
```

```python
import sys
from asmlib import Asm, v, a, s, check_hazards

NAME = "adaLN_cond__ssm_conv_h3__glu_gated_reglu__prompt"
SD = 2048 * 448 * 2
WS_KVT, WS_QP, WS_X1 = 0x0, 0x200000, 0x400000
WS_STAT, WS_MODP, WS_TAB, WS_GBF = 0x600000, 0x610000, 0x620000, 0x621000
WS_H, H_BYTES = 0x800000, 64 * 112 * 1024
WS_STAMP = 0x1000000
OPT = dict(stamp=False, nt=True, pf=True, extra=0)
LOG2E = 0x3FB8AA3B


def NT():
    return " nt" if OPT["nt"] else ""


class Stamps:
    def __init__(self, k, kid, first):
        self.k, self.kid, self.first, self.n = k, kid, first, 0

    def mark(self):
        if OPT["stamp"]:
            self.k(f"s_memrealtime {s(self.first + 2*self.n, 2)}")
            self.k("s_waitcnt lgkmcnt(0)")
            self.n += 1

    def flush(self, ws, srd, vt, tid):
        if not OPT["stamp"]:
            return
        k = self.k
        self.mark()
        k.srd(srd, ws, 0x10000, WS_STAMP + self.kid * 0x10000)
        k(f"s_lshl_b32 s3, s2, 6")
        k(f"v_lshlrev_b32 v{vt}, 16, v{tid}")
        for i in range(self.n):
            k(f"v_mov_b32 v{vt+1}, s{self.first + 2*i}")
            k(f"buffer_store_dword v{vt+1}, v{vt}, {s(srd,4)}, s3 offen offset:{4*i}")


def unpack(k, lo, hi, src):
    k(f"v_lshlrev_b32 v{lo}, 16, v{src}")
    k(f"v_and_b32 v{hi}, 0xffff0000, v{src}")


def dpp_add(k, r, ctrl):
    k(f"v_add_f32_dpp v{r}, v{r}, v{r} {ctrl} row_mask:0xf bank_mask:0xf")


def reduce8(k, r0, r1):
    for ctrl in ("quad_perm:[1,0,3,2]", "quad_perm:[2,3,0,1]", "row_half_mirror"):
        k("s_nop 0")
        dpp_add(k, r0, ctrl)
        dpp_add(k, r1, ctrl)


def gen_k0():
    k = Asm()
    st = Stamps(k, 0, 60)
    k.label("k0_prep_kernel")
    st.mark()
    k("s_cmp_ge_u32 s2, 498")
    k("s_cbranch_scc1 k0_end")
    k("s_load_dwordx8 s[4:11], s[0:1], 0")
    k("s_load_dwordx4 s[12:15], s[0:1], 80")
    k("s_load_dwordx2 s[16:17], s[0:1], 112")
    k("s_cmp_ge_u32 s2, 288")
    k("s_cbranch_scc1 k0_mod")
    k("s_cmp_ge_u32 s2, 224")
    k("s_cbranch_scc1 k0_stat")
    k("s_and_b32 s3, s2, 7")
    k("s_lshr_b32 s18, s2, 3")
    k("s_and_b32 s19, s18, 3")
    k("s_lshl2_add_u32 s19, s3, s19")
    k("s_lshr_b32 s18, s18, 2")
    k("s_mul_i32 s20, s19, 57344")
    k("s_lshl_b32 s21, s18, 7")
    k("s_add_u32 s20, s20, s21")
    k("v_and_b32 v8, 31, v0")
    k("v_lshrrev_b32 v9, 5, v0")
    k("v_mul_u32_u24 v1, 7168, v9")
    k("v_lshl_add_u32 v1, v8, 2, v1")
    k("v_add_u32 v1, s20, v1")
    k("v_add_u32 v2, 0xfffff580, v1")
    k("s_lshl_b32 s21, s18, 9")
    k("v_lshl_add_u32 v3, v8, 4, s21")
    k("s_movk_i32 s22, 4480")
    k("s_waitcnt lgkmcnt(0)")
    k.srd(24, 6, SD)
    k.srd(28, 8, SD)
    k.srd(32, 10, 3584)
    k.srd(36, 4, SD)
    KR, VR, QR = 10, 21, 32
    for j in range(3):
        k(f"buffer_load_dword v{KR+j}, v2, s[24:27], 0 offen offset:{896*j}{NT()}")

    def rows(dst, srd):
        for j in range(8):
            if j < 5:
                k(f"buffer_load_dword v{dst+j}, v1, {s(srd,4)}, 0 offen offset:{896*j}{NT()}")
            else:
                k(f"buffer_load_dword v{dst+j}, v1, {s(srd,4)}, s22 offen offset:{896*(j-5)}{NT()}")
    rows(KR + 3, 24)
    k("buffer_load_dwordx4 v[4:7], v3, s[32:35], 0 offen")
    rows(VR, 28)
    rows(QR, 36)
    k("s_branch k0_tile_body")

    k.label("k0_stat")
    k("s_sub_u32 s3, s2, 224")
    k("s_and_b32 s18, s3, 7")
    k("s_lshr_b32 s3, s3, 3")
    k("s_lshl3_add_u32 s3, s18, s3")
    k("s_lshl_b32 s3, s3, 5")
    k("v_lshrrev_b32 v1, 3, v0")
    k("v_add_u32 v1, s3, v1")
    k("v_and_b32 v2, 7, v0")
    k("v_mul_u32_u24 v3, 896, v1")
    k("v_lshl_add_u32 v3, v2, 4, v3")
    k("s_waitcnt lgkmcnt(0)")
    k.srd(36, 4, SD)
    for j in range(7):
        k(f"buffer_load_dwordx4 {v(8+4*j,4)}, v3, s[36:39], 0 offen offset:{128*j}{NT()}")
    k("s_branch k0_stat_body")

    k.label("k0_mod")
    k("s_sub_u32 s3, s2, 288")
    k("s_mul_i32 s18, s3, 1561")
    k("s_lshr_b32 s18, s18, 16")
    k("s_mul_i32 s19, s18, 42")
    k("s_sub_u32 s19, s3, s19")
    k("s_mul_i32 s20, s18, 96")
    k("v_lshrrev_b32 v1, 3, v0")
    k("v_add_u32 v1, s20, v1")
    k("v_and_b32 v2, 7, v0")
    k("v_mul_u32_u24 v3, 5376, v1")
    k("v_lshl_add_u32 v3, v2, 4, v3")
    k("s_lshl_b32 s20, s19, 7")
    k("v_add_u32 v3, s20, v3")
    k("v_add_u32 v4, 172032, v3")
    k("v_add_u32 v5, 344064, v3")
    k("v_lshlrev_b32 v1, 1, v1")
    k("s_waitcnt lgkmcnt(0)")
    k.srd(24, 12, 896)
    k.srd(28, 14, 448 * 5376)
    for j in range(3):
        k(f"buffer_load_ushort v{20+j}, v1, s[24:27], 0 offen offset:{64*j}")
    for j in range(3):
        k(f"buffer_load_dwordx4 {v(8+4*j,4)}, v{3+j}, s[28:31], 0 offen{NT()}")
    k.srd(32, 16, 5 * 10752, WS_MODP)
    k(f"s_mov_b32 s21, {0x80000000 | LOG2E:#x}")
    k("s_waitcnt vmcnt(3)")
    for j in range(3):
        k(f"v_lshlrev_b32 v{20+j}, 16, v{20+j}")
    for j in range(3):
        k(f"v_mul_f32 v{24+j}, s21, v{20+j}")
    for j in range(3):
        k(f"v_exp_f32 v{24+j}, v{24+j}")
    k("s_nop 0")
    for j in range(3):
        k(f"v_add_f32 v{24+j}, 1.0, v{24+j}")
    for j in range(3):
        k(f"v_rcp_f32 v{24+j}, v{24+j}")
    k("s_nop 0")
    for j in range(3):
        k(f"v_mul_f32 v{24+j}, v{24+j}, v{20+j}")
    k("v_cvt_pk_bf16_f32 v20, v24, v25")
    k("v_cvt_pk_bf16_f32 v21, v26, v26")
    unpack(k, 24, 25, 20)
    k("v_lshlrev_b32 v26, 16, v21")
    for j in range(3):
        k(f"s_waitcnt vmcnt({2-j})")
        for e in range(4):
            unpack(k, 40 + 2 * e, 41 + 2 * e, 8 + 4 * j + e)
        sp = 24 + (j & 2)
        sel = j & 1
        for e in range(4):
            if j == 0:
                k(f"v_pk_mul_f32 {v(32+2*e,2)}, {v(40+2*e,2)}, {v(sp,2)} op_sel:[0,{sel}] op_sel_hi:[1,{sel}]")
            else:
                k(f"v_pk_fma_f32 {v(32+2*e,2)}, {v(40+2*e,2)}, {v(sp,2)}, {v(32+2*e,2)} op_sel:[0,{sel},0] op_sel_hi:[1,{sel},1]")
    k("v_and_b32 v6, 63, v0")
    k("v_lshrrev_b32 v7, 4, v6")
    for e in range(4):
        k(f"v_permlane16_swap_b32 v{32+2*e}, v{33+2*e}")
    for e in range(4):
        k(f"v_add_f32 v{32+2*e}, v{32+2*e}, v{33+2*e}")
    k("v_lshl_add_u32 v7, v2, 3, v7")
    k("v_permlane32_swap_b32 v32, v34")
    k("v_permlane32_swap_b32 v36, v38")
    k("v_add_f32 v32, v32, v34")
    k("v_add_f32 v36, v36, v38")
    k("v_and_b32 v5, 8, v0")
    dpp_add(k, 32, "row_ror:8")
    dpp_add(k, 36, "row_ror:8")
    k("v_cmp_ne_u32 vcc, 0, v5")
    k("v_lshrrev_b32 v5, 1, v5")
    k("v_add_u32 v7, v7, v5")
    k("v_cndmask_b32 v32, v32, v36, vcc")
    k("v_and_b32 v5, 0xc0, v0")
    k("v_add_lshl_u32 v7, v7, v5, 2")
    k("ds_write_b32 v7, v32")
    k("v_lshlrev_b32 v6, 2, v6")
    k("s_mul_i32 s20, s18, 10752")
    k("s_lshl_b32 s19, s19, 8")
    k("s_add_u32 s20, s20, s19")
    k("v_lshlrev_b32 v5, 10, v5")
    k("s_waitcnt lgkmcnt(0)")
    k("s_barrier")
    k("ds_read2st64_b32 v[8:9], v6 offset0:0 offset1:1")
    k("ds_read2st64_b32 v[10:11], v6 offset0:2 offset1:3")
    k("v_add_u32 v6, v6, v5")
    k("v_add_u32 v6, s20, v6")
    k("s_waitcnt lgkmcnt(0)")
    k("v_pk_add_f32 v[8:9], v[8:9], v[10:11]")
    k("v_add_f32 v8, v8, v9")
    k("buffer_store_dword v8, v6, s[32:35], 0 offen")
    k("s_branch k0_fin")

    k.label("k0_stat_body")
    if OPT["pf"]:
        k("s_cmp_ge_u32 s2, 232")
        k("s_cbranch_scc1 k0_nopf")
        k("s_getpc_b64 s[20:21]")
        k.label("k0_pfpc")
        k("s_add_u32 s20, s20, k1_conv_kernel-k0_pfpc")
        k("s_addc_u32 s21, s21, 0")
        k("v_lshlrev_b32 v44, 4, v0")
        k("v_mov_b32 v45, s21")
        k("v_add_co_u32 v44, vcc, s20, v44")
        k("s_nop 1")
        k("v_addc_co_u32 v45, vcc, 0, v45, vcc")
        k("s_mov_b64 s[22:23], 4096")
        k("s_mov_b32 s18, (code_end-k1_conv_kernel)>>12")
        k.label("k0_pfloop")
        k("global_load_dwordx4 v[48:51], v[44:45], off")
        k("v_lshl_add_u64 v[44:45], v[44:45], 0, s[22:23]")
        k("s_sub_u32 s18, s18, 1")
        k("s_cmp_lg_u32 s18, 0")
        k("s_cbranch_scc1 k0_pfloop")
        k.label("k0_nopf")
    k.srd(32, 16, 16384, WS_STAT)
    k("s_mov_b32 s20, 0x3f803f80")
    k("v_mov_b32 v4, 0")
    k("v_mov_b32 v5, 0")
    k("v_lshlrev_b32 v1, 2, v1")
    k("v_lshl_add_u32 v1, v2, 13, v1")
    k("s_waitcnt vmcnt(0)")
    for r in range(8, 36):
        k(f"v_dot2c_f32_bf16 v4, s20, v{r}")
        k(f"v_dot2c_f32_bf16 v5, v{r}, v{r}")
    k("s_nop 1")
    reduce8(k, 4, 5)
    k(f"v_mul_f32 v4, 0x3b124925, v4")
    k(f"v_mul_f32 v5, 0x3b124925, v5")
    k("v_fma_f32 v5, -v4, v4, v5")
    k("v_max_f32 v5, 0, v5")
    k("v_add_f32 v5, 0x3727c5ac, v5")
    k("v_rsq_f32 v5, v5")
    k("v_cmp_eq_u32 vcc, 0, v2")
    k("v_mul_f32 v4, -v4, v5")
    k("s_nop 0")
    k("v_cndmask_b32 v4, v4, v5, vcc")
    k("buffer_store_dword v4, v1, s[32:35], 0 offen")
    k("s_branch k0_fin")

    k.label("k0_tile_body")
    KU, VU, SU, AC, O0, O1 = 40, 62, 78, 86, 104, 108
    k.srd(40, 16, SD, WS_KVT)
    k.srd(44, 16, SD, WS_QP)
    k("v_and_b32 v29, 7, v8")
    k("v_xor_b32 v30, v9, v29")
    k("v_lshlrev_b32 v30, 4, v30")
    k("v_lshl_add_u32 v30, v8, 8, v30")
    k("v_lshlrev_b32 v31, 1, v9")
    k("v_xor_b32 v31, v31, v29")
    k("v_lshlrev_b32 v31, 4, v31")
    k("v_lshl_add_u32 v31, v8, 8, v31")
    k("v_xor_b32 v29, 16, v31")
    k("v_bfe_u32 v2, v0, 4, 3")
    k("v_xor_b32 v2, v0, v2")
    k("v_lshlrev_b32 v2, 4, v2")
    k("v_lshrrev_b32 v1, 3, v0")
    k("v_and_b32 v3, 7, v0")
    k("v_lshlrev_b32 v3, 4, v3")
    k("v_lshl_add_u32 v1, v1, 12, v3")
    k("v_lshrrev_b32 v3, 4, v0")
    k("v_and_b32 v102, 15, v0")
    k("v_lshlrev_b32 v102, 4, v102")
    k("v_lshl_add_u32 v3, v3, 13, v102")
    k("s_lshl_b32 s18, s18, 18")
    k("s_lshl_b32 s20, s19, 7")
    k("s_add_u32 s20, s20, s18")
    k("s_add_u32 s21, s20, 0x20000")
    k("s_lshl_b32 s22, s19, 8")
    k("s_add_u32 s22, s22, s18")
    k("s_add_u32 s23, s22, 0x20000")
    k("s_waitcnt vmcnt(16)")
    st.mark()
    for j in range(11):
        unpack(k, KU + 2 * j, KU + 2 * j + 1, KR + j)
    unpack(k, SU + 0, SU + 2, 4)
    unpack(k, SU + 4, SU + 6, 5)
    unpack(k, SU + 1, SU + 3, 6)
    unpack(k, SU + 5, SU + 7, 7)
    for tap in range(4):
        for r in range(8):
            src = KU + 2 * (r + 3 - tap)
            if tap == 0:
                k(f"v_pk_mul_f32 {v(AC+2*r,2)}, {v(src,2)}, {v(SU,2)}")
            else:
                k(f"v_pk_fma_f32 {v(AC+2*r,2)}, {v(src,2)}, {v(SU+2*tap,2)}, {v(AC+2*r,2)}")
    k("s_waitcnt vmcnt(8)")
    for j in range(8):
        unpack(k, VU + 2 * j, VU + 2 * j + 1, VR + j)
    for r in range(8):
        k(f"v_pk_mul_f32 {v(AC+2*r,2)}, {v(AC+2*r,2)}, {v(VU+2*r,2)}")
    for h, O in ((0, O0), (1, O1)):
        for e in range(4):
            k(f"v_cvt_pk_bf16_f32 v{O+e}, v{AC+2*(7-2*e)+h}, v{AC+2*(6-2*e)+h}")
        k(f"ds_write_b128 v30, {v(O,4)} offset:{128*h}")
    k("s_waitcnt vmcnt(0)")
    k(f"ds_write_b128 v31, {v(QR,4)} offset:8192")
    k(f"ds_write_b128 v29, {v(QR+4,4)} offset:8192")
    k("s_waitcnt lgkmcnt(0)")
    k("s_barrier")
    for i in range(4):
        k(f"ds_read_b128 {v(40+4*i,4)}, v2 offset:{4096*i}")
    for i in range(4):
        k(f"s_waitcnt lgkmcnt({3-i})")
        if i < 2:
            k(f"buffer_store_dwordx4 {v(40+4*i,4)}, v1, s[40:43], s{20+i} offen")
        else:
            k(f"buffer_store_dwordx4 {v(40+4*i,4)}, v3, s[44:47], s{20+i} offen")
    k.label("k0_fin")
    st.n = 2
    st.flush(16, 48, 112, 0)
    k.label("k0_end")
    k("s_endpgm")
    return k, dict(vgpr=120, lds=16384, grid=498, block=256)


def gen_k1():
    k = Asm()
    st = Stamps(k, 1, 64)
    KVB, KVS = 0, 4608
    HB, HS = 9216, 4160
    RED = HB + 4 * HS
    LDS = RED + 32768
    k.label("k1_conv_kernel")
    st.mark()
    k("s_cmp_ge_u32 s2, 224")
    k("s_cbranch_scc1 k1_end")
    k("s_load_dwordx4 s[4:7], s[0:1], 32")
    k("s_load_dwordx2 s[8:9], s[0:1], 112")
    k("s_and_b32 s3, s2, 7")
    k("s_mul_i32 s3, s3, 28")
    k("s_lshr_b32 s10, s2, 3")
    k("s_add_u32 s10, s10, s3")
    k("v_lshrrev_b32 v1, 6, v0")
    k("v_and_b32 v2, 63, v0")
    k("v_readfirstlane_b32 s11, v1")
    k("v_lshlrev_b32 v3, 4, v2")
    k("v_lshlrev_b32 v4, 4, v0")
    k("v_add_u32 v5, -4, v4")
    k("s_lshl_b32 s12, s10, 13")
    k("s_add_u32 s13, s12, 4096")
    k("s_lshl_b32 s14, s11, 11")
    k("s_add_u32 s14, s14, s12")
    k("s_lshr_b32 s15, s11, 1")
    k("s_and_b32 s16, s11, 1")
    k("s_mul_i32 s17, s15, 4608")
    k("s_lshl_b32 s18, s16, 11")
    k("s_add_u32 s18, s18, s17")
    k("s_add_u32 m0, s18, 512")
    k("v_and_b32 v6, 7, v2")
    k("v_lshrrev_b32 v7, 3, v2")
    k("v_mul_u32_u24 v6, 10752, v6")
    k("v_mul_u32_u24 v7, 1792, v7")
    k("s_lshl_b32 s19, s10, 3")
    k("v_add3_u32 v6, v6, v7, s19")
    k("s_lshl_b32 s19, s10, 2")
    k("s_waitcnt lgkmcnt(0)")
    k("s_load_dword s20, s[6:7], s19")
    k.srd(24, 8, SD, WS_KVT)
    k.srd(28, 4, SD)
    k("buffer_load_dwordx4 v3, s[24:27], s14 offen lds")
    k("buffer_load_dwordx4 v3, s[24:27], s14 offen offset:1024 lds")
    k(f"buffer_load_dwordx4 v[64:67], v4, s[28:31], s12 offen{NT()}")
    k(f"buffer_load_dword v72, v5, s[28:31], s12 offen{NT()}")
    k(f"buffer_load_dwordx4 v[68:71], v4, s[28:31], s13 offen{NT()}")
    k(f"buffer_load_dword v73, v5, s[28:31], s13 offen{NT()}")
    k.srd(32, 8, 5 * 10752, WS_MODP)
    k.srd(36, 8, SD, WS_QP)
    k.srd(40, 8, 16384, WS_STAT)
    k("buffer_load_dwordx2 v[8:9], v6, s[32:35], 0 offen")
    Q, R, M, QF, U = 192, 200, 208, 216, 232
    k("s_lshl_b32 s21, s11, 11")
    k("s_add_u32 s22, s21, 8192")
    for n in range(2):
        k(f"buffer_load_dwordx4 {v(Q+4*n,4)}, v3, s[36:39], s14 offen offset:{1024*n}")
        k(f"buffer_load_dwordx4 {v(R+4*n,4)}, v3, s[40:43], s21 offen offset:{1024*n}")
        k(f"buffer_load_dwordx4 {v(M+4*n,4)}, v3, s[40:43], s22 offen offset:{1024*n}")
    for i in range(4):
        k(f"v_mov_b32 v{12+i}, 0")
    k("v_lshrrev_b32 v10, 5, v0")
    k("v_mul_u32_u24 v10, 4096, v10")
    k("v_add_u32 v10, v10, v4")
    k("v_bfe_u32 v11, v0, 1, 2")
    k("v_mul_u32_u24 v11, 4160, v11")
    k("v_and_b32 v7, 16, v4")
    k(f"v_add_u32 v11, {HB}, v11")
    k("v_cmp_gt_u32 vcc, 64, v0")
    k("v_add_u32 v11, v11, v7")
    k("v_and_b32 v7, 15, v2")
    k("v_cndmask_b32 v10, v11, v10, vcc")
    k("ds_write_b128 v10, v[12:15]")
    k("v_lshrrev_b32 v10, 4, v2")
    k("v_and_b32 v11, 1, v2")
    k("v_xor_b32 v11, 1, v11")
    k("v_mul_u32_u24 v11, 4160, v11")
    k("v_lshrrev_b32 v16, 1, v7")
    k("v_lshl_add_u32 v16, v10, 2, v16")
    k("v_lshl_add_u32 v16, v16, 2, v11")
    k("s_mul_i32 s23, s15, 8320")
    k("s_lshl_b32 s44, s16, 8")
    k("s_add_u32 s23, s23, s44")
    k(f"s_add_u32 s23, s23, {HB + 4}")
    k("v_add_u32 v16, s23, v16")
    for i in range(1, 4):
        k(f"v_add_u32 v{16+i}, {1024*i}, v16")
    k("v_lshlrev_b32 v20, 1, v7")
    k("v_sub_u32 v20, v20, v10")
    k("s_sub_u32 s23, s17, s44")
    k(f"s_add_u32 s23, s23, {512 + 16 - 192}")
    k("v_lshl_add_u32 v20, v20, 4, s23")
    k("v_bfe_u32 v21, v2, 1, 2")
    k("v_xor_b32 v21, v21, v10")
    k("v_lshl_add_u32 v21, v7, 2, v21")
    k("s_lshl_b32 s23, s11, 13")
    k(f"s_add_u32 s23, s23, {RED}")
    k("v_lshl_add_u32 v21, v21, 4, s23")
    k("v_bfe_u32 v22, v2, 3, 2")
    k("v_xor_b32 v22, v22, v2")
    k(f"s_add_u32 s23, s21, {RED}")
    k("v_lshl_add_u32 v22, v22, 4, s23")
    k("v_xor_b32 v23, 1, v2")
    k("s_lshl_b32 s23, s11, 10")
    k("s_add_u32 s23, s23, 512")
    k("v_lshl_add_u32 v23, v23, 3, s23")
    k("v_lshrrev_b32 v24, 3, v2")
    k("v_mul_u32_u24 v24, 28672, v24")
    k("v_and_b32 v25, 0x70, v3")
    k("v_add_u32 v24, v24, v25")
    k(f"v_add_u32 v4, {HB + 32}, v4")
    k("s_waitcnt vmcnt(7)")
    st.mark()
    for ch in range(2):
        A0, P = 64 + 4 * ch, 72 + ch
        k(f"ds_write_b128 v4, {v(A0,4)} offset:{8320*ch}")
        for e in range(4):
            k(f"v_alignbit_b32 v{76+4*ch+e}, v{A0+e}, v{P if e == 0 else A0+e-1}, 16")
        k(f"ds_write_b128 v4, {v(76+4*ch,4)} offset:{8320*ch+4160}")
    k("s_waitcnt lgkmcnt(0)")
    k("s_barrier")
    st.mark()
    ACC = 32

    def reads(r):
        A, B = (64, 96) if r % 2 == 0 else (128, 160)
        out = []
        for q in range(8):
            o = 16 * r + 128 * (q & 1)
            out.append(f"ds_read_b128 {v(B+4*q,4)}, v20 offset:{512*q + 64*(3-r)}")
            out.append(f"ds_read2_b32 {v(A+4*q,2)}, v{16+(q>>1)} offset0:{o} offset1:{o+1}")
            out.append(f"ds_read2_b32 {v(A+4*q+2,2)}, v{16+(q>>1)} offset0:{o+2} offset1:{o+3}")
        return out
    for x in reads(0):
        k(x)
    k("s_waitcnt vmcnt(6)")
    reduce8(k, 8, 9)
    k("v_cvt_pk_bf16_f32 v8, v8, v9")
    k("s_nop 0")
    for i in range(6):
        k(f"v_readlane_b32 s{44+i}, v8, {8*i}")
    k("s_nop 1")
    k("v_lshlrev_b32 v10, 16, s45")
    k("s_and_b32 s50, s45, 0xffff0000")
    k("v_add_f32 v10, 1.0, v10")
    k("v_add_f32 v11, 1.0, s50")
    k("v_cvt_pk_bf16_f32 v10, v10, v11")
    unpack(k, 26, 27, 10)
    k("s_lshl_b32 s50, s46, 16")
    k("s_and_b32 s51, s46, 0xffff0000")
    k("v_pk_mul_f32 v[26:27], v[26:27], s[50:51]")
    k("v_lshlrev_b32 v28, 16, s44")
    k("s_and_b32 s52, s44, 0xffff0000")
    k("v_mov_b32 v29, s52")
    k("v_pk_mul_f32 v[28:29], v[28:29], s[50:51]")
    k("v_lshlrev_b32 v30, 16, s20")
    k("s_and_b32 s52, s20, 0xffff0000")
    k("v_mov_b32 v31, s52")
    k("v_lshlrev_b32 v10, 16, s48")
    k("s_and_b32 s52, s48, 0xffff0000")
    k("v_add_f32 v10, 1.0, v10")
    k("v_add_f32 v11, 1.0, s52")
    k("v_cvt_pk_bf16_f32 v12, v10, v10")
    k("v_cvt_pk_bf16_f32 v14, v11, v11")
    k("s_pack_ll_b32_b16 s52, s47, s47")
    k("s_pack_hh_b32_b16 s53, s47, s47")
    k("v_mov_b32 v13, s52")
    k("v_mov_b32 v15, s53")
    k("v_lshlrev_b32 v10, 16, s49")
    k("s_and_b32 s52, s49, 0xffff0000")
    k("v_mov_b32 v11, s52")
    k.srd(56, 8, 8192, WS_TAB)
    k("v_lshlrev_b32 v9, 13, v0")
    k("s_lshl_b32 s52, s10, 4")
    k("s_lshl_b32 s53, s10, 3")
    k("s_add_u32 s53, s53, 4096")
    k("buffer_store_dwordx4 v[12:15], v9, s[56:59], s52 offen")
    k("buffer_store_dwordx2 v[10:11], v9, s[56:59], s53 offen")
    k.srd(60, 8, SD, WS_X1)
    k("s_mul_i32 s54, s11, 458752")
    k("s_lshl_b32 s55, s10, 7")
    k("s_add_u32 s54, s54, s55")
    k("s_add_u32 s55, s54, 229376")

    side = ["s_waitcnt vmcnt(2)"]
    for n in range(2):
        for e in range(4):
            side.append(f"v_lshlrev_b32 v{QF+8*n+e}, 16, v{Q+4*n+e}")
            side.append(f"v_and_b32 v{QF+8*n+4+e}, 0xffff0000, v{Q+4*n+e}")
    for n in range(2):
        for ch in range(2):
            for e in (0, 2):
                d = U + 8 * n + 4 * ch + e
                side.append(f"v_pk_fma_f32 {v(d,2)}, {v(QF+8*n+4*ch+e,2)}, {v(R+4*n+e,2)}, {v(M+4*n+e,2)}")
    for n in range(2):
        for ch in range(2):
            for e in (0, 2):
                d = U + 8 * n + 4 * ch + e
                side.append(f"v_fma_f32 v{d}, v{d}, v{26+ch}, v{28+ch}\nv_fma_f32 v{d+1}, v{d+1}, v{26+ch}, v{28+ch}")
    for r in range(4):
        A, B = (64, 96) if r % 2 == 0 else (128, 160)
        k("s_waitcnt lgkmcnt(0)")
        fill = reads(r + 1) if r < 3 else list(side)
        seen = set()
        for q in range(8):
            for d in range(8 - q):
                n = q + d
                c = "0" if (r == 0 and n not in seen) else v(ACC + 4 * n, 4)
                seen.add(n)
                k(f"v_mfma_f32_16x16x32_bf16 {v(ACC+4*n,4)}, {v(A+4*q,4)}, {v(B+4*d,4)}, {c}")
                if fill:
                    k(fill.pop(0))
        assert not fill
    st.mark()
    KV = 64
    for n in range(2):
        for ch in range(2):
            k(f"ds_read_b64 {v(KV+4*n+2*ch,2)}, v23 offset:{KVS*ch+512*n}")
    for n in range(8):
        if n == 7:
            k("s_nop 0")
        k(f"ds_write_b128 v21, {v(ACC+4*n,4)} offset:{1024*n}")
    KF = 72
    k("s_waitcnt lgkmcnt(8)")
    for n in range(2):
        for ch in range(2):
            src, d = KV + 4 * n + 2 * ch, KF + 8 * n + 4 * ch
            unpack(k, d + 3, d + 2, src)
            unpack(k, d + 1, d + 0, src + 1)
    k("s_waitcnt lgkmcnt(0)")
    k("s_barrier")
    Y = 96
    for n in range(2):
        for w in range(4):
            k(f"ds_read_b128 {v(Y+16*n+4*w,4)}, v22 offset:{8192*w+1024*n}")
    for n in range(2):
        for ch in range(2):
            k(f"s_waitcnt lgkmcnt({6-4*n-2*ch})")
            y0 = Y + 16 * n + 8 * ch
            for e in (0, 2):
                k(f"v_pk_add_f32 {v(y0+e,2)}, {v(y0+e,2)}, {v(y0+4+e,2)}")
            for e in (0, 2):
                k(f"v_pk_fma_f32 {v(y0+e,2)}, {v(KF+8*n+4*ch+e,2)}, v[30:31], {v(y0+e,2)} op_sel:[0,{ch},0] op_sel_hi:[1,{ch},1]")
            for e in (0, 2):
                k(f"v_pk_fma_f32 {v(y0+e,2)}, {v(U+8*n+4*ch+e,2)}, {v(y0+e,2)}, {v(QF+8*n+4*ch+e,2)}")
        for e in range(4):
            k(f"v_cvt_pk_bf16_f32 v{128+4*n+e}, v{Y+16*n+e}, v{Y+16*n+8+e}")
        k(f"buffer_store_dwordx4 {v(128+4*n,4)}, v24, s[60:63], s{54+n} offen")
    st.flush(8, 56, 10, 0)
    k.label("k1_end")
    k("s_endpgm")
    return k, dict(vgpr=248, lds=LDS, grid=224, block=256)


def gen_k2():
    k = Asm()
    st = Stamps(k, 2, 64)
    NSLOT = 9
    X, TB, MK, DG, NA, ACC = 16, 128, 156, 164, 172, 172
    k.label("k2_gemm1_kernel")
    st.mark()
    k("s_cmp_ge_u32 s2, 224")
    k("s_cbranch_scc1 k2_end")
    k("s_load_dwordx4 s[4:7], s[0:1], 56")
    k("s_load_dwordx2 s[8:9], s[0:1], 112")
    k("v_lshrrev_b32 v1, 6, v0")
    k("v_and_b32 v2, 63, v0")
    k("v_readfirstlane_b32 s11, v1")
    k("s_and_b32 s3, s2, 7")
    k("s_lshr_b32 s10, s2, 3")
    k("s_and_b32 s12, s10, 3")
    k("s_and_b32 s13, s3, 6")
    k("s_lshl1_add_u32 s12, s13, s12")
    k("s_and_b32 s13, s3, 1")
    k("s_mul_i32 s13, s13, 7")
    k("s_lshr_b32 s10, s10, 2")
    k("s_add_u32 s13, s13, s10")
    k("s_lshl2_add_u32 s14, s12, s11")
    k("s_mul_i32 s15, s14, 28672")
    k("v_and_b32 v3, 31, v2")
    k("v_lshrrev_b32 v4, 5, v2")
    k("v_lshlrev_b32 v5, 9, v4")
    k("v_lshl_add_u32 v5, v3, 2, v5")
    k("v_and_b32 v6, 0x13, v3")
    k("v_bfe_u32 v7, v3, 2, 1")
    k("v_lshl_or_b32 v6, v7, 3, v6")
    k("v_bfe_u32 v7, v3, 3, 1")
    k("v_lshl_or_b32 v6, v7, 2, v6")
    k("v_lshlrev_b32 v7, 3, v6")
    k("s_waitcnt lgkmcnt(0)")
    k.srd(24, 8, SD, WS_X1)
    k.srd(28, 8, 3584, WS_TAB)
    k("s_cmp_ge_u32 s11, 2")
    k("s_cselect_b32 s32, s6, s4")
    k("s_cselect_b32 s33, s7, s5")
    k(f"s_mov_b32 s34, {448*3584}")
    k("s_mov_b32 s35, 0x20000")
    for B in range(14):
        k(f"buffer_load_dwordx2 {v(TB+2*B,2)}, v7, s[28:31], 0 offen offset:{256*B}")
    for kk in range(28):
        if kk and kk % 4 == 0:
            k("s_add_u32 s15, s15, 4096")
        for j in range(4):
            k(f"buffer_load_dword v{X+4*kk+j}, v5, s[24:27], s15 offen offset:{1024*(kk%4)+128*j}")
    k("v_lshrrev_b32 v8, 3, v2")
    k("v_bfe_u32 v9, v2, 4, 1")
    k("s_and_b32 s16, s11, 2")
    k("v_or_b32 v9, s16, v9")
    k("v_lshlrev_b32 v9, 1, v9")
    k("v_xor_b32 v9, v9, v2")
    k("v_and_b32 v9, 7, v9")
    k("v_mul_u32_u24 v8, 3584, v8")
    k("v_lshl_add_u32 v8, v9, 4, v8")
    k("s_and_b32 s16, s11, 1")
    k("s_mul_i32 s16, s16, 114688")
    k("s_lshl_b32 s17, s13, 8")
    k("s_add_u32 s16, s16, s17")
    k("v_add_u32 v8, s16, v8")
    k("s_lshl_b32 s18, s11, 12")

    def dma(stage):
        grp, sk = divmod(stage, 7)
        out = []
        for j in range(4):
            out.append([f"s_add_u32 m0, s18, {(stage % NSLOT)*16384 + j*1024}",
                        f"s_mov_b32 s19, {(64*sk+8*j)*3584 + grp*128}",
                        "buffer_load_dwordx4 v8, s[32:35], s19 offen lds"])
        return out
    k("v_lshlrev_b32 v9, 3, v4")
    k("v_sub_u32 v9, v6, v9")
    k("v_mov_b32 v10, 0xffff")
    k("v_and_b32 v11, 1, v9")
    k("v_lshlrev_b32 v11, 4, v11")
    k("v_lshlrev_b32 v10, v11, v10")
    k("v_ashrrev_i32 v9, 1, v9")
    for u in range(2):
        for j in range(4):
            k(f"v_cmp_eq_u32 s[{36+2*(4*u+j)}:{37+2*(4*u+j)}], {8*u+j}, v9")
    k("s_nop 0")
    for u in range(2):
        for j in range(4):
            k(f"v_cndmask_b32 v{MK+4*u+j}, 0, v10, s[{36+2*(4*u+j)}:{37+2*(4*u+j)}]")
    k("v_bfe_u32 v9, v2, 4, 1")
    k("v_bfe_u32 v10, v2, 2, 2")
    k("v_lshl_add_u32 v10, v4, 3, v10")
    k("v_lshlrev_b32 v10, 7, v10")
    k("v_lshl_add_u32 v10, v9, 13, v10")
    k("v_and_b32 v11, 3, v2")
    k("v_lshl_add_u32 v10, v11, 3, v10")
    k("v_bfe_u32 v11, v2, 3, 2")
    k("v_lshl_add_u32 v236, v11, 5, v10")
    for t in range(1, 4):
        k(f"v_xor_b32 v{236+t}, {32*t}, v236")
    k("s_mov_b32 s20, 0x3f803f80")
    k("v_mov_b32 v12, 0")
    k("v_mov_b32 v13, 0")
    pend = [d for sidx in range(NSLOT - 1) for d in dma(sidx)]
    issued = 0
    for kk in range(28):
        out_x = 4 * (27 - kk)
        if out_x + issued <= 62 or kk == 0:
            k(f"s_waitcnt vmcnt({min(62, out_x + issued)})")
        if kk == 12:
            st.mark()
        for j in range(4):
            k(f"v_dot2c_f32_bf16 v12, s20, v{X+4*kk+j}")
            k(f"v_dot2c_f32_bf16 v13, v{X+4*kk+j}, v{X+4*kk+j}")
        while pend and kk >= 12 and out_x + issued < 60:
            for x in pend.pop(0):
                k(x)
            issued += 1
    assert not pend
    st.mark()
    k("s_nop 1")
    k("v_mov_b32 v14, v12")
    k("v_mov_b32 v15, v13")
    k("s_nop 1")
    k("v_permlane32_swap_b32 v12, v14")
    k("v_permlane32_swap_b32 v13, v15")
    k("v_add_f32 v12, v12, v14")
    k("v_add_f32 v13, v13, v15")
    k("v_mul_f32 v12, 0xbb124925, v12")
    k("v_mul_f32 v13, 0x3b124925, v13")
    k("v_fma_f32 v13, -v12, v12, v13")
    k("v_max_f32 v13, 0, v13")
    k("v_add_f32 v13, 0x3727c5ac, v13")
    k("v_rcp_f32 v240, v13")
    k("v_sqrt_f32 v13, v13")
    k("v_cmp_eq_u32 vcc, 0, v4")
    k("v_cvt_pk_bf16_f32 v14, v12, v13")
    unpack(k, 10, 11, 14)
    k("v_sub_f32 v14, v12, v10")
    k("v_sub_f32 v15, v13, v11")
    k("v_cvt_pk_bf16_f32 v14, v10, v14")
    k("v_cvt_pk_bf16_f32 v15, v11, v15")
    k("v_cndmask_b32 v14, 0, v14, vcc")
    k("v_cndmask_b32 v15, 0, v15, vcc")

    def diag(B, u):
        for j in range(4):
            k(f"v_and_b32 v{DG+4*u+j}, v{TB+2*B}, v{MK+4*u+j}")

    def cvt(B, half):
        acc = NA + 16 * (B % 3)
        for j in range(4 * half, 4 * half + 4):
            k(f"v_cvt_pk_bf16_f32 v{X+8*B+j}, v{acc+2*j}, v{acc+2*j+1}")
    for B in range(16):
        acc = NA + 16 * (B % 3)
        if B < 14:
            diag(B, 0)
            if B >= 2:
                cvt(B - 2, 0)
            k(f"v_mfma_f32_32x32x8_bf16 {v(acc,16)}, {v(TB+2*B,2)}, v[14:15], 0")
            diag(B, 1)
            k(f"v_mfma_f32_32x32x16_bf16 {v(acc,16)}, {v(DG,4)}, {v(X+8*B,4)}, {v(acc,16)}")
            if B >= 2:
                cvt(B - 2, 1)
            else:
                k("s_nop 0")
            k(f"v_mfma_f32_32x32x16_bf16 {v(acc,16)}, {v(DG+4,4)}, {v(X+8*B+4,4)}, {v(acc,16)}")
        else:
            if B == 15:
                k("s_nop 3")
            cvt(B - 2, 0)
            cvt(B - 2, 1)
    st.mark()
    k.srd(36, 8, H_BYTES, WS_H)
    k("s_mul_i32 s21, s14, 112")
    k("s_lshl3_add_u32 s21, s13, s21")
    k("s_lshl_b32 s21, s21, 10")
    k("v_lshlrev_b32 v3, 4, v2")
    AF = 128
    BASE = 244
    vm = [("dma", sidx) for sidx in range(NSLOT - 1) for _ in range(4)]

    def enter_stage(sidx):
        last = max(i for i, e in enumerate(vm) if e == ("dma", sidx))
        k(f"s_waitcnt vmcnt({len(vm) - 1 - last})")
        k("s_barrier")
        for t in range(4):
            k(f"v_add_u32 v{BASE+t}, {(sidx % NSLOT)*16384}, v{236+t}")

    def areads(step):
        kk = step % 4
        buf = AF + 16 * (step % 2)
        return [f"ds_read_b64_tr_b16 {v(buf+4*t+2*u,2)}, v{BASE+t} offset:{2048*kk+512*u}" for t in range(4) for u in range(2)]
    enter_stage(0)
    for x in areads(0):
        k(x)
    for step in range(56):
        grp, kx = divmod(step, 28)
        buf = AF + 16 * (step % 2)
        k("s_waitcnt lgkmcnt(0)")
        fill = []
        if step + 1 < 56:
            if (step + 1) % 4 == 0:
                enter_stage((step + 1) // 4)
            fill = [[x] for x in areads(step + 1)]
        nxt = step // 4 + NSLOT - 1
        extra = []
        if nxt < 14:
            extra = dma(nxt)[step % 4]
            vm.append(("dma", nxt))
        for t in range(4):
            c = "0" if kx == 0 else v(ACC + 16 * t, 16)
            k(f"v_mfma_f32_32x32x16_bf16 {v(ACC+16*t,16)}, {v(buf+4*t,4)}, {v(X+4*kx,4)}, {c}")
            for _ in range(3 if t < 2 else 2):
                if fill:
                    for x in fill.pop(0):
                        k(x)
            if t == 3:
                for x in extra:
                    k(x)
        if kx == 27:
            k("s_nop 8")
            for t in range(4):
                T = ACC + 16 * t
                for e in range(0, 8, 2):
                    k(f"v_pk_mul_f32 {v(T+8+e,2)}, {v(T+8+e,2)}, v[240:241] op_sel_hi:[1,0]")
                for e in range(8):
                    k(f"v_max_f32 v{T+e}, 0, v{T+e}")
                for e in range(0, 8, 2):
                    k(f"v_pk_mul_f32 {v(T+e,2)}, {v(T+e,2)}, {v(T+8+e,2)}")
                O = 160 + 4 * (t % 2)
                for e in range(4):
                    k(f"v_cvt_pk_bf16_f32 v{O+e}, v{T+2*e}, v{T+2*e+1}")
                k(f"buffer_store_dwordx4 {v(O,4)}, v3, s[36:39], s21 offen offset:{1024*t}")
                vm.append(("st", 0))
            if grp == 0:
                k("s_add_u32 s21, s21, 4096")
                st.mark()
    st.flush(8, 56, 10, 0)
    k.label("k2_end")
    k("s_endpgm")
    return k, dict(vgpr=248, lds=NSLOT * 16384, grid=224, block=256)


def gen_k3():
    k = Asm()
    st = Stamps(k, 3, 64)
    D, NS = 13, 14
    RING = NS * 2048
    HR, ACC, AF, XR, GB = 16, 128, 192, 208, 216
    k.label("k3_gemm2_kernel")
    st.mark()
    k("s_cmp_ge_u32 s2, 224")
    k("s_cbranch_scc1 k3_end")
    k("s_load_dwordx2 s[4:5], s[0:1], 72")
    k("s_load_dwordx2 s[6:7], s[0:1], 96")
    k("s_load_dwordx2 s[8:9], s[0:1], 112")
    k("v_lshrrev_b32 v1, 6, v0")
    k("v_and_b32 v2, 63, v0")
    k("v_readfirstlane_b32 s11, v1")
    k("s_and_b32 s3, s2, 7")
    k("s_lshr_b32 s10, s2, 3")
    k("s_and_b32 s12, s10, 3")
    k("s_lshl2_add_u32 s12, s3, s12")
    k("s_lshr_b32 s13, s10, 2")
    k("s_lshr_b32 s14, s11, 1")
    k("s_lshl1_add_u32 s14, s12, s14")
    k("s_xor_b32 s15, s14, 1")
    k("s_mul_i32 s16, s11, 28672")
    k("s_mul_i32 s17, s14, 114688")
    k("s_add_u32 s17, s17, s16")
    k("s_mul_i32 s18, s15, 114688")
    k("s_add_u32 s18, s18, s16")
    k("v_lshlrev_b32 v3, 4, v2")
    k("v_add_u32 v4, s17, v3")
    k("v_add_u32 v5, s18, v3")
    k("v_lshrrev_b32 v6, 3, v2")
    k("v_bfe_u32 v7, v2, 4, 1")
    k("v_lshlrev_b32 v7, 2, v7")
    k("v_xor_b32 v7, v7, v2")
    k("v_and_b32 v7, 7, v7")
    k("v_mul_u32_u24 v6, 896, v6")
    k("v_lshl_add_u32 v6, v7, 4, v6")
    k("s_mul_i32 s17, s11, 401408")
    k("s_lshl_b32 s18, s13, 7")
    k("s_add_u32 s17, s17, s18")
    k("v_add_u32 v6, s17, v6")
    k("s_waitcnt lgkmcnt(0)")
    k.srd(24, 4, 1792 * 896)
    k.srd(28, 8, H_BYTES, WS_H)
    vm = []

    def loads(kk):
        out = []
        for u in range(2):
            out.append([f"s_add_u32 m0, s16, {(kk % NS)*2048 + 1024*u}",
                        f"s_mov_b32 s19, {(16*kk+8*u)*896}",
                        "buffer_load_dwordx4 v6, s[24:27], s19 offen lds"])
        pre = [f"s_movk_i32 s20, {4096*(kk//4)}"] if kk % 4 == 0 else []
        out.append(pre + [f"buffer_load_dwordx4 {v(HR+8*(kk%NS),4)}, v4, s[28:31], s20 offen offset:{1024*(kk%4)}"])
        out.append([f"buffer_load_dwordx4 {v(HR+8*(kk%NS)+4,4)}, v5, s[28:31], s20 offen offset:{1024*(kk%4)}"])
        vm.extend([kk] * 4)
        return out
    for kk in range(D):
        for grp in loads(kk):
            for x in grp:
                k(x)
    k("v_lshrrev_b32 v8, 5, v2")
    k("v_bfe_u32 v9, v2, 2, 2")
    k("v_lshl_add_u32 v9, v8, 2, v9")
    k("v_lshlrev_b32 v9, 7, v9")
    k("v_and_b32 v10, 3, v2")
    k("v_lshl_add_u32 v9, v10, 3, v9")
    k("v_bfe_u32 v10, v2, 4, 1")
    k("v_lshl_add_u32 v9, v10, 5, v9")
    k("v_bfe_u32 v10, v2, 3, 1")
    k("s_and_b32 s21, s11, 1")
    k("v_xor_b32 v10, s21, v10")
    k("v_lshl_add_u32 v9, v10, 6, v9")
    k("v_xor_b32 v10, 64, v9")
    k("v_add_u32 v9, s16, v9")
    k("v_add_u32 v10, s16, v10")
    k("v_add_u32 v11, s16, v3")
    for j in range(1, 4):
        k(f"s_xor_b32 s22, s11, {j}")
        k("s_mul_i32 s22, s22, 28672")
        k(f"v_add_u32 v{11+j}, s22, v3")
    k.srd(32, 8, SD, WS_X1)
    k.srd(36, 8, 1792, WS_GBF)
    k.srd(40, 6, SD)
    k("s_lshl1_add_u32 s21, s13, s21")
    k("v_and_b32 v1, 31, v2")
    k("v_lshlrev_b32 v15, 8, v8")
    k("v_lshl_add_u32 v15, v1, 2, v15")
    k("s_mul_i32 s22, s14, 28672")
    k("s_lshl_b32 s23, s21, 11")
    k("s_add_u32 s23, s23, s22")
    k("v_lshlrev_b32 v7, 4, v8")
    k("s_lshl_b32 s44, s21, 7")
    k("v_mul_u32_u24 v1, 896, v1")
    k("v_add_u32 v1, v1, v7")
    k("s_lshl_b32 s45, s21, 6")
    k("s_add_u32 s45, s45, s22")

    def areads(kk):
        buf = AF + 8 * (kk % 2)
        return [f"ds_read_b64_tr_b16 {v(buf+4*dt+2*u,2)}, v{9+dt} offset:{2048*(kk%NS)+1024*u}" for dt in range(2) for u in range(2)]

    def wait_for(kk):
        last = max(i for i, e in enumerate(vm) if e == kk)
        k(f"s_waitcnt vmcnt({len(vm)-1-last})")
    wait_for(0)
    st.mark()
    for x in areads(0):
        k(x)
    for kk in range(28):
        buf = AF + 8 * (kk % 2)
        if kk + 1 < 28:
            wait_for(kk + 1)
        k("s_waitcnt lgkmcnt(0)")
        fill = [[x] for x in areads(kk + 1)] if kk + 1 < 28 else []
        ld = loads(kk + D) if kk + D < 28 else []
        if kk == 16:
            ld = []
            for r in range(4):
                ld.append([f"buffer_load_dword v{XR+2*r}, v15, s[32:35], s23 offen offset:{512*r}",
                           f"buffer_load_dword v{XR+2*r+1}, v15, s[32:35], s23 offen offset:{512*r+128}",
                           f"buffer_load_dwordx4 {v(GB+4*r,4)}, v7, s[36:39], s44 offen offset:{32*r}"])
                vm.extend(["ep"] * 3)
        for j in range(4):
            c = "0" if kk == 0 else v(ACC + 16 * j, 16)
            k(f"v_mfma_f32_32x32x16_bf16 {v(ACC+16*j,16)}, {v(buf+4*(j&1),4)}, {v(HR+8*(kk%NS)+4*(j>>1),4)}, {c}")
            if j < 2:
                for _ in range(2):
                    if fill:
                        k(fill.pop(0)[0])
            if ld:
                for x in ld.pop(0):
                    k(x)
    st.mark()
    k("s_nop 9")
    for j in range(1, 4):
        for r in range(4):
            k(f"ds_write_b128 v11, {v(ACC+16*j+4*r,4)} offset:{4096*(j-1)+1024*r}")
    XF = 16
    k("s_waitcnt vmcnt(0)")
    for r in range(8):
        unpack(k, XF + 2 * r, XF + 2 * r + 1, XR + r)
    k("s_waitcnt lgkmcnt(0)")
    k("s_barrier")
    for r in range(4):
        for j in range(1, 4):
            k(f"ds_read_b128 {v(ACC+16*j+4*r,4)}, v{11+j} offset:{4096*(j-1)+1024*r}")
    O = 40
    for r in range(4):
        k(f"s_waitcnt lgkmcnt({9-3*r})")
        for e in (0, 2):
            x = 4 * r + e
            k(f"v_pk_add_f32 {v(ACC+x,2)}, {v(ACC+x,2)}, {v(ACC+16+x,2)}")
            k(f"v_pk_add_f32 {v(ACC+32+x,2)}, {v(ACC+32+x,2)}, {v(ACC+48+x,2)}")
        for e in (0, 2):
            x = 4 * r + e
            k(f"v_pk_add_f32 {v(ACC+x,2)}, {v(ACC+x,2)}, {v(ACC+32+x,2)}")
        for e in (0, 2):
            x = 4 * r + e
            k(f"v_pk_fma_f32 {v(ACC+x,2)}, {v(ACC+x,2)}, {v(GB+x,2)}, {v(XF+x,2)}")
        for e in (0, 2):
            x = 4 * r + e
            k(f"v_cvt_pk_bf16_f32 v{O+x//2}, v{ACC+x}, v{ACC+x+1}")
        if r % 2 == 1:
            b = O + 2 * (r - 1)
            k("s_nop 1")
            k(f"v_permlane32_swap_b32 v{b}, v{b+2}")
            k(f"v_permlane32_swap_b32 v{b+1}, v{b+3}")
            k(f"buffer_store_dwordx4 {v(b,4)}, v1, s[40:43], s45 offen offset:{16*(r-1)}")
    st.flush(8, 56, 10, 0)
    k.label("k3_end")
    k("s_endpgm")
    return k, dict(vgpr=232, lds=4 * RING, grid=224, block=256)


def gen_empty():
    k = Asm()
    k.label("kx_empty_kernel")
    k("s_endpgm")
    return k, dict(vgpr=8, lds=0, grid=224, block=256)


def gen_diag():
    k = Asm()
    k.label("kd_diag_kernel")
    k("s_cmp_ge_u32 s2, 1")
    k("s_cbranch_scc1 kd_end")
    k("s_load_dwordx2 s[4:5], s[0:1], 112")
    k("s_waitcnt lgkmcnt(0)")
    k(f"s_add_u32 s4, s4, {WS_STAMP}")
    k("s_addc_u32 s5, s5, 0")
    da, db = OPT["da"], OPT["db"]
    wg = OPT.get("dwg", 8)
    k(f"s_load_dword s6, s[4:5], {wg*64}")
    k(f"s_load_dword s7, s[4:5], {(da//16)*0x10000 + wg*64 + (da%16)*4}")
    k(f"s_load_dword s8, s[4:5], {(db//16)*0x10000 + wg*64 + (db%16)*4}")
    k("s_waitcnt lgkmcnt(0)")
    k("s_sub_u32 s8, s8, s7")
    k("s_add_u32 s8, s8, 10000")
    k("s_mov_b32 s9, 100000")
    k.label("kd_loop")
    k("s_memrealtime s[10:11]")
    k("s_waitcnt lgkmcnt(0)")
    k("s_sub_u32 s10, s10, s6")
    k("s_cmp_ge_u32 s10, s8")
    k("s_cbranch_scc1 kd_end")
    k("s_sub_u32 s9, s9, 1")
    k("s_cmp_lg_u32 s9, 0")
    k("s_cbranch_scc1 kd_loop")
    k.label("kd_end")
    k("s_endpgm")
    return k, dict(vgpr=8, lds=0, grid=1, block=64)


def build(path):
    ref = open(f"cdna_kernels/{NAME}.s.ref").read().splitlines()
    head = [l for l in ref if l.startswith(";") and "@launch" not in l and "Override launch" not in l and "grid=ceil" not in l]
    ks = [gen_k0(), gen_k1(), gen_k2(), gen_k3()]
    launches = list(ks)
    if "da" in OPT:
        e = gen_diag()
        ks.append(e)
        launches.append(e)
    if OPT["extra"]:
        e = gen_empty()
        ks.append(e)
        launches += [e] * OPT["extra"]
    out = "\n".join(head) + "\n"
    for k, m in launches:
        out += f"; @launch kernel={k.lines[0][:-1]} grid=({m['grid']},1,1) block=({m['block']},1,1) lds={m['lds']}\n"
    out += '.amdgcn_target "amdgcn-amd-amdhsa--gfx950"\n.text\n'
    nbad = 0
    for k, m in ks:
        nm = k.lines[0][:-1]
        for b in check_hazards(k.lines, nm):
            print("HAZARD", b)
            nbad += 1
        out += f".globl {nm}\n.p2align 8\n.type {nm},@function\n" + k.text()
    out += ".p2align 8\n.fill 1024, 4, 0xbf800000\ncode_end:\n    s_endpgm\n"
    out += '.section .rodata,"a"\n'
    for k, m in ks:
        nm = k.lines[0][:-1]
        acc = (m["vgpr"] + 3) // 4 * 4
        out += f""".p2align 6
.amdhsa_kernel {nm}
  .amdhsa_next_free_vgpr {m['vgpr'] + m.get('agpr', 0)}
  .amdhsa_next_free_sgpr 96
  .amdhsa_accum_offset {acc}
  .amdhsa_group_segment_fixed_size 0
  .amdhsa_kernarg_size 120
  .amdhsa_user_sgpr_count 2
  .amdhsa_user_sgpr_kernarg_segment_ptr 1
  .amdhsa_system_sgpr_workgroup_id_x 1
  .amdhsa_float_denorm_mode_32 3
.end_amdhsa_kernel
"""
    open(path, "w").write(out)
    print("wrote", path, len(out), "bytes; hazards:", nbad)


if __name__ == "__main__":
    path = sys.argv[1] if len(sys.argv) > 1 else f"cdna_kernels/{NAME}.s"
    for o in sys.argv[2:]:
        key, val = o.split("=")
        OPT[key] = int(val)
    build(path)
```

```python
import re


def v(a, n=1):
    return f"v{a}" if n == 1 else f"v[{a}:{a+n-1}]"


def a(x, n=1):
    return f"a{x}" if n == 1 else f"a[{x}:{x+n-1}]"


def s(x, n=1):
    return f"s{x}" if n == 1 else f"s[{x}:{x+n-1}]"


class Asm:
    def __init__(self):
        self.lines = []

    def __call__(self, text):
        for ln in text.split("\n"):
            ln = ln.strip()
            if ln:
                self.lines.append(ln)

    def label(self, name):
        self.lines.append(name + ":")

    def srd(self, d, base, nbytes, add=0):
        if add:
            self(f"s_add_u32 s{d}, s{base}, {add:#x}")
            self(f"s_addc_u32 s{d+1}, s{base+1}, 0")
        elif d != base:
            self(f"s_mov_b32 s{d}, s{base}")
            self(f"s_mov_b32 s{d+1}, s{base+1}")
        self(f"s_mov_b32 s{d+2}, {nbytes:#x}")
        self(f"s_mov_b32 s{d+3}, 0x20000")

    def text(self):
        out = []
        for ln in self.lines:
            out.append(ln if ln.endswith(":") or ln.startswith(".") or ln.startswith(";") else "    " + ln)
        return "\n".join(out) + "\n"


_REG = re.compile(r"\b([vas])(?:(\d+)\b|\[(\d+):(\d+)\])")
TRANS = ("v_exp_f32", "v_log_f32", "v_rcp_f32", "v_rsq_f32", "v_sqrt_f32", "v_sin_f32", "v_cos_f32")


def regs(op):
    r = set()
    for m in _REG.finditer(op):
        k = m.group(1)
        if m.group(2) is not None:
            r.add((k, int(m.group(2))))
        else:
            r.update((k, i) for i in range(int(m.group(3)), int(m.group(4)) + 1))
    if re.search(r"\bvcc\b", op):
        r.add(("s", "vcc"))
    if re.search(r"\bm0\b", op):
        r.add(("s", "m0"))
    return r


def parse(ln):
    ln = ln.split(";")[0].strip()
    m = re.match(r"(\S+)\s*(.*)", ln)
    mn, rest = m.group(1), m.group(2)
    ops = [o.strip() for o in re.split(r",(?![^\[]*\])", rest)] if rest else []
    W, R = set(), set()
    kind = "other"
    if mn.startswith("v_mfma"):
        kind = "mfma"
        W = regs(ops[0])
        R = regs(ops[1]) | regs(ops[2]) | regs(ops[3])
    elif mn.startswith("v_"):
        kind = "valu"
        W = regs(ops[0])
        R = set().union(*[regs(o) for o in ops[1:]]) if len(ops) > 1 else set()
        if mn.startswith(("v_fmac", "v_dot2c", "v_pk_fmac", "v_writelane")) or "dpp" in mn or "row_" in rest or "quad_perm" in rest:
            R |= W
        if mn.startswith(("v_permlane16_swap", "v_permlane32_swap", "v_swap")):
            W |= regs(ops[1])
            R |= W
        if mn.startswith(("v_add_co", "v_addc_co", "v_sub_co", "v_subb_co")):
            W |= regs(ops[1])
    elif mn.startswith(("buffer_", "global_")):
        kind = "vmem"
        allr = set().union(*[regs(o) for o in ops])
        if "load" in mn and not re.search(r"\blds\b", rest) and "_lds_" not in mn:
            W = regs(ops[0])
            R = set().union(*[regs(o) for o in ops[1:]])
        else:
            R = allr
            if re.search(r"\blds\b", rest) or "_lds_" in mn:
                R.add(("s", "m0"))
    elif mn.startswith("ds_"):
        kind = "ds"
        if "read" in mn or "permute" in mn or "swizzle" in mn:
            W = regs(ops[0])
            R = set().union(*[regs(o) for o in ops[1:]])
        else:
            R = set().union(*[regs(o) for o in ops])
    elif mn.startswith("s_"):
        kind = "salu"
        if ops and not mn.startswith(("s_cmp", "s_waitcnt", "s_nop", "s_branch", "s_cbranch", "s_barrier", "s_setprio", "s_sleep", "s_endpgm", "s_bitcmp")):
            W = regs(ops[0])
            R = set().union(*[regs(o) for o in ops[1:]]) if len(ops) > 1 else set()
        else:
            R = set().union(*[regs(o) for o in ops]) if ops else set()
    return dict(mn=mn, ops=ops, rest=rest, W=W, R=R, kind=kind, text=ln)


def passes(mn):
    if "32x32" in mn:
        return 8
    if "16x16" in mn:
        return 4
    return 2


def check_hazards(lines, name=""):
    ins = [parse(l) for l in lines if not (l.endswith(":") or l.startswith(".") or l.startswith(";"))]
    bad = []
    for j, c in enumerate(ins):
        dist = 0
        for i in range(j - 1, max(-1, j - 24), -1):
            p = ins[i]
            need = 0
            vW = {r for r in p["W"] if r[0] in "va"}
            sW = {r for r in p["W"] if r[0] == "s"}
            if p["kind"] == "valu":
                dl = p["mn"].startswith("v_dot")
                if c["kind"] == "mfma" and vW & c["R"]:
                    need = max(need, 3 if dl else 2)
                if c["kind"] == "valu":
                    if c["mn"].startswith("v_permlane") and vW & c["R"]:
                        need = max(need, 2)
                    if ("row_" in c["rest"] or "quad_perm" in c["rest"] or "wave_" in c["rest"]) and vW & c["R"]:
                        need = max(need, 2)
                    if c["mn"].startswith(("v_readlane", "v_readfirstlane")) and vW & c["R"]:
                        need = max(need, 1)
                    if p["mn"].startswith(TRANS) and vW & c["R"] and not c["mn"].startswith(TRANS):
                        need = max(need, 1)
                    if sW & c["R"]:
                        need = max(need, 4 if c["mn"].startswith(("v_readlane", "v_writelane")) else 2)
                    if ("sdwa" in p["mn"] or "dst_sel" in p["rest"]) and vW & (c["R"] | c["W"]):
                        need = max(need, 1)
                    if dl and vW & (c["R"] | c["W"]):
                        same = c["mn"] == p["mn"]
                        srcab = set().union(*[regs(o) for o in c["ops"][1:3]]) if same else None
                        if not same or (vW & srcab):
                            need = max(need, 3)
                if dl and c["kind"] in ("vmem", "ds") and vW & c["R"]:
                    need = max(need, 3)
                if c["kind"] == "vmem" and sW & c["R"]:
                    need = max(need, 5)
                if p["mn"].startswith("v_cmpx") and c["kind"] == "mfma":
                    need = max(need, 4)
            if p["kind"] == "salu" and ("s", "m0") in p["W"] and c["kind"] == "vmem" and ("s", "m0") in c["R"]:
                need = max(need, 1)
            if p["kind"] == "vmem" and "store" in p["mn"] and ("x4" in p["mn"] or "x3" in p["mn"]):
                data = regs(p["ops"][0]) if p["mn"].startswith("buffer") else regs(p["ops"][1])
                if data & c["W"]:
                    need = max(need, 2 if c["kind"] == "valu" else 1)
            if p["kind"] == "mfma":
                n = passes(p["mn"])
                D = p["W"]
                if c["kind"] == "mfma":
                    C = regs(c["ops"][3])
                    AB = regs(c["ops"][1]) | regs(c["ops"][2])
                    if D & AB:
                        need = max(need, {2: 5, 4: 8, 8: 12}[n])
                    if D & C and not (D == C and passes(c["mn"]) == n):
                        need = max(need, {2: 4, 4: 6, 8: 10}[n])
                    if D & c["W"] and not (D & C):
                        need = max(need, 0)
                elif c["kind"] in ("valu", "vmem", "ds"):
                    if D & (c["R"] | c["W"]):
                        need = max(need, {2: 5, 4: 8, 8: 12}[n])
                    if c["kind"] == "valu" and regs(p["ops"][3]) & c["W"]:
                        need = max(need, {2: 1, 4: 3, 8: 7}[n])
            if need > dist:
                bad.append(f"{name}: need {need} have {dist}: [{p['text']}] -> [{c['text']}]")
            if p["mn"] == "s_nop":
                dist += int(p["ops"][0], 0) + 1
            else:
                dist += 1
            if p["mn"] in ("s_branch", "s_endpgm", "s_setpc_b64"):
                break
    return bad


class Sched(Asm):
    def __init__(self):
        super().__init__()
        self.vmq, self.lgq = [], []
        self.issued = set()

    def vm(self, text, tag=None):
        self(text)
        self.vmq.append(tag)
        self.issued.add(("vmcnt", tag))

    def lg(self, text, tag=None):
        self(text)
        self.lgq.append(tag)
        self.issued.add(("lgkmcnt", tag))

    def _wait(self, q, tags, name, cap):
        for t in tags:
            assert (name, t) in self.issued, f"wait for {t} before issue"
        idx = [i for i, t in enumerate(q) if t in tags]
        if not idx:
            return
        n = len(q) - 1 - max(idx)
        n = min(n, cap)
        self(f"s_waitcnt {name}({n})")
        del q[: len(q) - n]

    def wvm(self, *tags):
        self._wait(self.vmq, tags, "vmcnt", 62)

    def wlg(self, *tags):
        self._wait(self.lgq, tags, "lgkmcnt", 14)

    def wvm0(self):
        self("s_waitcnt vmcnt(0)")
        self.vmq = []

    def wlg0(self):
        self("s_waitcnt lgkmcnt(0)")
        self.lgq = []

    def run(self, item):
        if item is None:
            return
        if isinstance(item, str):
            self(item)
        elif callable(item):
            item()
        else:
            for x in item:
                self.run(x)
```

```python
import sys
from asmlib import Asm, Sched, v, a, s, check_hazards

NAME = "adaLN_cond__ssm_conv_h3__glu_gated_reglu__prompt"
SD = 2048 * 448 * 2
WS_KVT, WS_QT, WS_X1 = 0x0, 0x200000, 0x400000
WS_STAT, WS_MODP, WS_GBF, WS_CNT = 0x600000, 0x610000, 0x621000, 0x630000
CNT_BYTES = 16 * 20 * 128
WS_RK = 0x640000
WS_H, H_BYTES = 0x800000, 64 * 112 * 1024
WS_WF, WF_BYTES = 0x1000000, 112 * 29 * 1024
WS_WD, WD_BYTES = 0x1400000, 7 * 112 * 2048
WS_STAMP = 0x2000000
OPT = dict(stamp=0, nt=1, pf=1, extra=0, D0=8, stg=2, pa=40, ca=52, LA=12, PL=8, wdstep=2, siga=4, sigb=44, rkl=22, fa=3, spin=20000, wt=1)
LOG2E = 0x3FB8AA3B
INV448, EPS = 0x3B124925, 0x3727C5AC


def NT():
    return " nt" if OPT["nt"] else ""


def WT():
    return " sc1" if OPT["wt"] else ""


class Stamps:
    def __init__(self, k, kid, first):
        self.k, self.kid, self.first, self.n = k, kid, first, 0

    def mark(self, idx=None):
        if OPT["stamp"]:
            if idx is not None:
                self.n = idx
            self.k(f"s_memrealtime {s(self.first + 2*self.n, 2)}")
            self.k("s_waitcnt lgkmcnt(0)")
            if isinstance(self.k, Sched):
                self.k.lgq = []
            self.n += 1

    def flush(self, ws, srd, vt, tid):
        if not OPT["stamp"]:
            return
        k = self.k
        self.mark()
        k.srd(srd, ws, 0x10000, WS_STAMP + self.kid * 0x10000)
        k("s_lshl_b32 s3, s2, 6")
        k(f"v_lshlrev_b32 v{vt}, 16, v{tid}")
        for i in range(self.n):
            k(f"v_mov_b32 v{vt+1}, s{self.first + 2*i}")
            k(f"buffer_store_dword v{vt+1}, v{vt}, {s(srd,4)}, s3 offen offset:{4*i}")


def unpack(lo, hi, src):
    return [f"v_lshlrev_b32 v{lo}, 16, v{src}", f"v_and_b32 v{hi}, 0xffff0000, v{src}"]


def dpp_add(r, ctrl):
    return f"v_add_f32_dpp v{r}, v{r}, v{r} {ctrl} row_mask:0xf bank_mask:0xf"


def reduce8(r0, r1):
    out = []
    for ctrl in ("quad_perm:[1,0,3,2]", "quad_perm:[2,3,0,1]", "row_half_mirror"):
        out += ["s_nop 0", dpp_add(r0, ctrl), dpp_add(r1, ctrl)]
    return out


def ln_finish(sm, sq, t):
    return [f"v_mul_f32 v{sm}, {INV448:#x}, v{sm}",
            f"v_mul_f32 v{sq}, {INV448:#x}, v{sq}",
            f"v_fma_f32 v{sq}, -v{sm}, v{sm}, v{sq}",
            f"v_max_f32 v{sq}, 0, v{sq}",
            f"v_cvt_pk_bf16_f32 v{t}, v{sm}, v{sq}",
            f"v_and_b32 v{sq}, 0xffff0000, v{t}",
            f"v_add_f32 v{sq}, {EPS:#x}, v{sq}",
            f"v_cvt_pk_bf16_f32 v{sq}, v{sq}, v{sq}",
            f"v_lshlrev_b32 v{sq}, 16, v{sq}",
            f"v_sqrt_f32 v{sq}, v{sq}",
            f"v_lshlrev_b32 v{sm}, 16, v{t}",
            f"v_cvt_pk_bf16_f32 v{sq}, v{sq}, v{sq}",
            f"v_lshlrev_b32 v{sq}, 16, v{sq}"]


def gen_k0():
    k = Sched()
    st = Stamps(k, 0, 60)
    k.label("k0_prep_kernel")
    st.mark()
    k("s_cmp_ge_u32 s2, 498")
    k("s_cbranch_scc1 k0_end")
    k("s_load_dwordx8 s[4:11], s[0:1], 0")
    k("s_load_dwordx4 s[12:15], s[0:1], 80")
    k("s_load_dwordx2 s[16:17], s[0:1], 112")
    k("s_cmp_ge_u32 s2, 288")
    k("s_cbranch_scc1 k0_mod")
    k("s_cmp_ge_u32 s2, 224")
    k("s_cbranch_scc1 k0_stat")
    k("s_and_b32 s3, s2, 7")
    k("s_lshr_b32 s18, s2, 3")
    k("s_and_b32 s19, s18, 3")
    k("s_lshl2_add_u32 s19, s3, s19")
    k("s_lshr_b32 s18, s18, 2")
    k("s_mul_i32 s20, s19, 57344")
    k("s_lshl_b32 s21, s18, 7")
    k("s_add_u32 s20, s20, s21")
    k("v_and_b32 v8, 31, v0")
    k("v_lshrrev_b32 v9, 5, v0")
    k("v_mul_u32_u24 v1, 7168, v9")
    k("v_lshl_add_u32 v1, v8, 2, v1")
    k("v_add_u32 v1, s20, v1")
    k("v_add_u32 v2, 0xfffff580, v1")
    k("s_lshl_b32 s21, s18, 9")
    k("v_lshl_add_u32 v3, v8, 4, s21")
    k("s_movk_i32 s22, 4480")
    k("s_waitcnt lgkmcnt(0)")
    k.srd(24, 6, SD)
    k.srd(28, 8, SD)
    k.srd(32, 10, 3584)
    k.srd(36, 4, SD)
    KR, VR, QR = 10, 21, 32
    for j in range(3):
        k(f"buffer_load_dword v{KR+j}, v2, s[24:27], 0 offen offset:{896*j}{NT()}")

    def rows(dst, srd):
        for j in range(8):
            if j < 5:
                k(f"buffer_load_dword v{dst+j}, v1, {s(srd,4)}, 0 offen offset:{896*j}{NT()}")
            else:
                k(f"buffer_load_dword v{dst+j}, v1, {s(srd,4)}, s22 offen offset:{896*(j-5)}{NT()}")
    rows(KR + 3, 24)
    k("buffer_load_dwordx4 v[4:7], v3, s[32:35], 0 offen")
    rows(VR, 28)
    rows(QR, 36)
    k("s_branch k0_tile_body")

    k.label("k0_stat")
    k("s_sub_u32 s19, s2, 224")
    k("s_and_b32 s18, s19, 7")
    k("s_lshr_b32 s3, s19, 3")
    k("s_lshl3_add_u32 s3, s18, s3")
    k("s_lshl_b32 s3, s3, 5")
    k("v_lshrrev_b32 v1, 3, v0")
    k("v_add_u32 v1, s3, v1")
    k("v_and_b32 v2, 7, v0")
    k("v_mul_u32_u24 v3, 896, v1")
    k("v_lshl_add_u32 v3, v2, 4, v3")
    k("s_waitcnt lgkmcnt(0)")
    k.srd(36, 4, SD)
    for j in range(7):
        k(f"buffer_load_dwordx4 {v(8+4*j,4)}, v3, s[36:39], 0 offen offset:{128*j}{NT()}")
    k("s_branch k0_stat_body")

    k.label("k0_mod")
    k("s_sub_u32 s3, s2, 288")
    k("s_mul_i32 s18, s3, 1561")
    k("s_lshr_b32 s18, s18, 16")
    k("s_mul_i32 s19, s18, 42")
    k("s_sub_u32 s19, s3, s19")
    k("s_mul_i32 s20, s18, 96")
    k("v_lshrrev_b32 v1, 3, v0")
    k("v_add_u32 v1, s20, v1")
    k("v_and_b32 v2, 7, v0")
    k("v_mul_u32_u24 v3, 5376, v1")
    k("v_lshl_add_u32 v3, v2, 4, v3")
    k("s_lshl_b32 s20, s19, 7")
    k("v_add_u32 v3, s20, v3")
    k("v_add_u32 v4, 172032, v3")
    k("v_add_u32 v5, 344064, v3")
    k("v_lshlrev_b32 v1, 1, v1")
    k("s_waitcnt lgkmcnt(0)")
    k.srd(24, 12, 896)
    k.srd(28, 14, 448 * 5376)
    for j in range(3):
        k(f"buffer_load_ushort v{20+j}, v1, s[24:27], 0 offen offset:{64*j}")
    for j in range(3):
        k(f"buffer_load_dwordx4 {v(8+4*j,4)}, v{3+j}, s[28:31], 0 offen{NT()}")
    k.srd(32, 16, 5 * 10752, WS_MODP)
    k(f"s_mov_b32 s21, {0x80000000 | LOG2E:#x}")
    k("s_waitcnt vmcnt(3)")
    st.mark(1)
    for j in range(3):
        k(f"v_lshlrev_b32 v{20+j}, 16, v{20+j}")
    for j in range(3):
        k(f"v_mul_f32 v{24+j}, s21, v{20+j}")
    for j in range(3):
        k(f"v_exp_f32 v{24+j}, v{24+j}")
    k("s_nop 0")
    for j in range(3):
        k(f"v_add_f32 v{24+j}, 1.0, v{24+j}")
    for j in range(3):
        k(f"v_rcp_f32 v{24+j}, v{24+j}")
    k("s_nop 0")
    for j in range(3):
        k(f"v_mul_f32 v{24+j}, v{24+j}, v{20+j}")
    k("v_cvt_pk_bf16_f32 v20, v24, v25")
    k("v_cvt_pk_bf16_f32 v21, v26, v26")
    k("v_lshlrev_b32 v24, 16, v20")
    k("v_and_b32 v26, 0xffff0000, v20")
    k("v_lshlrev_b32 v28, 16, v21")
    for j in range(3):
        k(f"s_waitcnt vmcnt({2-j})")
        for e in range(4):
            k.run(unpack(40 + 2 * e, 41 + 2 * e, 8 + 4 * j + e))
        for e in range(4):
            if j == 0:
                k(f"v_pk_mul_f32 {v(32+2*e,2)}, {v(40+2*e,2)}, {v(24+2*j,2)} op_sel_hi:[1,0]")
            else:
                k(f"v_pk_fma_f32 {v(32+2*e,2)}, {v(40+2*e,2)}, {v(24+2*j,2)}, {v(32+2*e,2)} op_sel_hi:[1,0,1]")
    k("v_and_b32 v6, 63, v0")
    k("v_lshrrev_b32 v7, 4, v6")
    for e in range(4):
        k(f"v_permlane16_swap_b32 v{32+2*e}, v{33+2*e}")
    for e in range(4):
        k(f"v_add_f32 v{32+2*e}, v{32+2*e}, v{33+2*e}")
    k("v_lshl_add_u32 v7, v2, 3, v7")
    k("v_permlane32_swap_b32 v32, v34")
    k("v_permlane32_swap_b32 v36, v38")
    k("v_add_f32 v32, v32, v34")
    k("v_add_f32 v36, v36, v38")
    k("v_and_b32 v5, 8, v0")
    k(dpp_add(32, "row_ror:8"))
    k(dpp_add(36, "row_ror:8"))
    k("v_cmp_ne_u32 vcc, 0, v5")
    k("v_lshrrev_b32 v5, 1, v5")
    k("v_add_u32 v7, v7, v5")
    k("v_cndmask_b32 v32, v32, v36, vcc")
    k("v_and_b32 v5, 0xc0, v0")
    k("v_add_lshl_u32 v7, v7, v5, 2")
    k("ds_write_b32 v7, v32")
    k("v_lshlrev_b32 v6, 2, v6")
    k("s_mul_i32 s20, s18, 10752")
    k("s_lshl_b32 s19, s19, 8")
    k("s_add_u32 s20, s20, s19")
    k("v_lshlrev_b32 v5, 10, v5")
    k("s_waitcnt lgkmcnt(0)")
    k("s_barrier")
    k("ds_read2st64_b32 v[8:9], v6 offset0:0 offset1:1")
    k("ds_read2st64_b32 v[10:11], v6 offset0:2 offset1:3")
    k("v_add_u32 v6, v6, v5")
    k("v_add_u32 v6, s20, v6")
    k("s_waitcnt lgkmcnt(0)")
    k("v_pk_add_f32 v[8:9], v[8:9], v[10:11]")
    k("v_add_f32 v8, v8, v9")
    k("buffer_store_dword v8, v6, s[32:35], 0 offen")
    k("s_branch k0_fin")

    k.label("k0_stat_body")
    k.srd(32, 16, 16384, WS_STAT)
    k.srd(40, 16, CNT_BYTES, WS_CNT)
    k("s_mov_b32 s20, 0x3f803f80")
    k("v_mov_b32 v4, 0")
    k("v_mov_b32 v5, 0")
    k("v_lshlrev_b32 v6, 13, v0")
    k("s_lshl_b32 s19, s19, 7")
    k("v_add_u32 v6, s19, v6")
    k("v_lshlrev_b32 v1, 2, v1")
    k("v_lshl_add_u32 v1, v2, 13, v1")
    NPF = 0
    if OPT["pf"]:
        NPF = 1
        k("s_getpc_b64 s[22:23]")
        k.label("k0_pfpc")
        k("s_add_u32 s22, s22, k1_conv_kernel-k0_pfpc")
        k("s_addc_u32 s23, s23, 0")
        k("s_lshr_b32 s21, s19, 10")
        k("s_lshl_b32 s21, s21, 12")
        k("s_min_u32 s21, s21, code_end-k1_conv_kernel-4096")
        k("v_lshl_add_u32 v44, v0, 4, s21")
        k("v_mov_b32 v45, 0")
        k("v_lshl_add_u64 v[44:45], v[44:45], 0, s[22:23]")
        k("global_load_dwordx4 v[48:51], v[44:45], off")
    k("buffer_store_dword v4, v6, s[40:43], 0 offen")
    k.srd(40, 16, 32768, WS_RK)
    k("s_lshl_b32 s21, s19, 3")
    k("v_lshl_add_u32 v6, v0, 2, s21")
    k("buffer_store_dword v4, v6, s[40:43], 0 offen")
    k(f"s_waitcnt vmcnt({2+NPF})")
    st.mark(1)
    for r in range(8, 36):
        k(f"v_dot2c_f32_bf16 v4, s20, v{r}")
        k(f"v_dot2c_f32_bf16 v5, v{r}, v{r}")
    k("s_nop 1")
    k.run(reduce8(4, 5))
    k.run(ln_finish(4, 5, 6))
    k("v_rcp_f32 v5, v5")
    k("v_cmp_eq_u32 vcc, 0, v2")
    k("v_mul_f32 v4, -v4, v5")
    k("s_nop 0")
    k("v_cndmask_b32 v4, v4, v5, vcc")
    k("buffer_store_dword v4, v1, s[32:35], 0 offen")
    k("s_branch k0_fin")

    k.label("k0_tile_body")
    KU, VU, SU, AC, O0, O1 = 40, 62, 78, 86, 104, 108
    k.srd(40, 16, SD, WS_KVT)
    k.srd(44, 16, SD, WS_QT)
    k("v_and_b32 v29, 7, v8")
    k("v_xor_b32 v30, v9, v29")
    k("v_lshlrev_b32 v30, 4, v30")
    k("v_lshl_add_u32 v30, v8, 8, v30")
    k("v_bfe_u32 v2, v0, 4, 3")
    k("v_xor_b32 v2, v0, v2")
    k("v_lshlrev_b32 v2, 4, v2")
    k("v_lshrrev_b32 v1, 3, v0")
    k("v_and_b32 v3, 7, v0")
    k("v_lshlrev_b32 v3, 4, v3")
    k("v_lshl_add_u32 v1, v1, 12, v3")
    k("s_lshl_b32 s18, s18, 18")
    k("s_lshl_b32 s20, s19, 7")
    k("s_add_u32 s20, s20, s18")
    k("s_add_u32 s21, s20, 0x20000")
    k("s_mov_b32 s22, 0x05040100")
    k("s_mov_b32 s23, 0x07060302")
    k("s_waitcnt vmcnt(16)")
    st.mark(1)
    for j in range(11):
        k.run(unpack(KU + 2 * j, KU + 2 * j + 1, KR + j))
    k.run(unpack(SU + 0, SU + 2, 4) + unpack(SU + 4, SU + 6, 5) + unpack(SU + 1, SU + 3, 6) + unpack(SU + 5, SU + 7, 7))
    for tap in range(4):
        for r in range(8):
            src = KU + 2 * (r + 3 - tap)
            if tap == 0:
                k(f"v_pk_mul_f32 {v(AC+2*r,2)}, {v(src,2)}, {v(SU,2)}")
            else:
                k(f"v_pk_fma_f32 {v(AC+2*r,2)}, {v(src,2)}, {v(SU+2*tap,2)}, {v(AC+2*r,2)}")
    k("s_waitcnt vmcnt(8)")
    for j in range(8):
        k.run(unpack(VU + 2 * j, VU + 2 * j + 1, VR + j))
    for r in range(8):
        k(f"v_pk_mul_f32 {v(AC+2*r,2)}, {v(AC+2*r,2)}, {v(VU+2*r,2)}")
    for h, O in ((0, O0), (1, O1)):
        for e in range(4):
            k(f"v_cvt_pk_bf16_f32 v{O+e}, v{AC+2*(7-2*e)+h}, v{AC+2*(6-2*e)+h}")
        k(f"ds_write_b128 v30, {v(O,4)} offset:{128*h}")
    k("s_waitcnt vmcnt(0)")
    for h in range(2):
        for e in range(4):
            k(f"v_perm_b32 v{40+4*h+e}, v{QR+2*e+1}, v{QR+2*e}, s{22+h}")
        k(f"ds_write_b128 v30, {v(40+4*h,4)} offset:{8192+128*h}")
    k("s_waitcnt lgkmcnt(0)")
    k("s_barrier")
    for i in range(4):
        k(f"ds_read_b128 {v(48+4*i,4)}, v2 offset:{4096*i}")
    for i in range(4):
        k(f"s_waitcnt lgkmcnt({3-i})")
        k(f"buffer_store_dwordx4 {v(48+4*i,4)}, v1, {s(40+4*(i>>1),4)}, s{20+(i&1)} offen")
    k.label("k0_fin")
    st.n = 2
    st.flush(16, 48, 112, 0)
    k.label("k0_end")
    k("s_endpgm")
    return k, dict(vgpr=120, lds=16384, grid=498, block=256)


def gen_k1():
    k = Sched()
    st = Stamps(k, 1, 64)
    KVS = 4608
    HB = 9216
    RED = HB + 4 * 4160
    LDS = RED + 32768
    k.label("k1_conv_kernel")
    st.mark()
    k("s_cmp_ge_u32 s2, 385")
    k("s_cbranch_scc1 k1_end")
    k("s_load_dwordx2 s[8:9], s[0:1], 112")
    k("v_lshrrev_b32 v1, 6, v0")
    k("v_and_b32 v2, 63, v0")
    k("v_readfirstlane_b32 s11, v1")
    k("v_lshlrev_b32 v3, 4, v2")
    k("s_cmp_ge_u32 s2, 224")
    k("s_cbranch_scc1 k1_aux")
    k("s_load_dwordx4 s[4:7], s[0:1], 32")
    k("s_setprio 2")
    k("s_and_b32 s3, s2, 7")
    k("s_mul_i32 s3, s3, 28")
    k("s_lshr_b32 s10, s2, 3")
    k("s_add_u32 s10, s10, s3")
    k("v_lshlrev_b32 v4, 4, v0")
    k("v_add_u32 v5, -4, v4")
    k("s_lshl_b32 s12, s10, 13")
    k("s_add_u32 s13, s12, 4096")
    k("s_lshl_b32 s14, s11, 11")
    k("s_add_u32 s14, s14, s12")
    k("s_lshr_b32 s15, s11, 1")
    k("s_and_b32 s16, s11, 1")
    k("s_mul_i32 s17, s15, 4608")
    k("s_lshl_b32 s18, s16, 11")
    k("s_add_u32 s18, s18, s17")
    k("s_add_u32 m0, s18, 512")
    k("v_and_b32 v6, 7, v2")
    k("v_lshrrev_b32 v7, 3, v2")
    k("v_mul_u32_u24 v6, 10752, v6")
    k("v_mul_u32_u24 v8, 1792, v7")
    k("s_lshl_b32 s19, s10, 3")
    k("v_add3_u32 v6, v6, v8, s19")
    k("s_lshl_b32 s19, s10, 2")
    k("s_waitcnt lgkmcnt(0)")
    k("s_load_dword s20, s[6:7], s19")
    k.srd(24, 8, SD, WS_KVT)
    k.srd(28, 4, SD)
    k.vm(f"buffer_load_dwordx4 v[64:67], v4, s[28:31], s12 offen{NT()}", "h")
    k.vm(f"buffer_load_dwordx4 v[68:71], v4, s[28:31], s13 offen{NT()}", "h")
    k.vm(f"buffer_load_dword v72, v5, s[28:31], s12 offen{NT()}", "h")
    k.vm(f"buffer_load_dword v73, v5, s[28:31], s13 offen{NT()}", "h")
    k.vm("buffer_load_dwordx4 v3, s[24:27], s14 offen lds", "kv")
    k.vm("buffer_load_dwordx4 v3, s[24:27], s14 offen offset:1024 lds", "kv")
    k.srd(32, 8, 5 * 10752, WS_MODP)
    k.srd(36, 8, SD, WS_QT)
    k.srd(40, 8, 16384, WS_STAT)
    k.vm("buffer_load_dwordx2 v[8:9], v6, s[32:35], 0 offen", "mod")
    Q, R, M, QF = 192, 200, 216, 232
    k("v_bfe_u32 v25, v2, 2, 1")
    k("v_and_b32 v10, 3, v2")
    k("v_lshl_add_u32 v10, v7, 2, v10")
    k("v_lshlrev_b32 v11, 5, v10")
    k("v_lshlrev_b32 v10, 4, v10")
    k("v_lshl_add_u32 v6, v25, 12, v10")
    k("s_lshl_b32 s21, s11, 11")
    k("s_add_u32 s22, s21, 8192")
    k("s_lshl_b32 s23, s11, 10")
    k("s_add_u32 s44, s23, s12")
    for n in range(2):
        k.vm(f"buffer_load_dwordx4 {v(Q+4*n,4)}, v6, s[36:39], s44 offen offset:{512*n}", "ep")
        for i in range(2):
            k.vm(f"buffer_load_dwordx4 {v(R+8*n+4*i,4)}, v11, s[40:43], s21 offen offset:{1024*n+16*i}", "ep")
            k.vm(f"buffer_load_dwordx4 {v(M+8*n+4*i,4)}, v11, s[40:43], s22 offen offset:{1024*n+16*i}", "ep")
    k("v_mul_u32_u24 v23, 4608, v25")
    k("s_add_u32 s23, s23, 512")
    k("v_add3_u32 v23, v23, v10, s23")
    k("v_mul_u32_u24 v24, 28672, v7")
    k("v_and_b32 v6, 0x70, v3")
    k("v_add_u32 v24, v24, v6")
    k("v_and_b32 v6, 3, v7")
    k("v_xor_b32 v6, v6, v25")
    k("v_lshlrev_b32 v6, 4, v6")
    k("v_xor_b32 v6, v6, v11")
    k("v_lshl_add_u32 v6, v25, 14, v6")
    k(f"s_add_u32 s23, s21, {RED}")
    k("v_xor_b32 v26, 16, v6")
    k("v_add_u32 v22, s23, v6")
    k("v_add_u32 v26, s23, v26")
    for i in range(4):
        k(f"v_mov_b32 v{12+i}, 0")
    k("v_lshrrev_b32 v10, 5, v0")
    k("v_mul_u32_u24 v10, 4096, v10")
    k("v_add_u32 v10, v10, v4")
    k("v_bfe_u32 v11, v0, 1, 2")
    k("v_mul_u32_u24 v11, 4160, v11")
    k("v_and_b32 v7, 16, v4")
    k(f"v_add_u32 v11, {HB}, v11")
    k("v_cmp_gt_u32 vcc, 64, v0")
    k("v_add_u32 v11, v11, v7")
    k("v_and_b32 v7, 15, v2")
    k("v_cndmask_b32 v10, v11, v10, vcc")
    k("ds_write_b128 v10, v[12:15]")
    k("v_lshrrev_b32 v10, 4, v2")
    k("v_and_b32 v11, 1, v2")
    k("v_xor_b32 v11, 1, v11")
    k("v_mul_u32_u24 v11, 4160, v11")
    k("v_lshrrev_b32 v16, 1, v7")
    k("v_lshl_add_u32 v16, v10, 2, v16")
    k("v_lshl_add_u32 v16, v16, 2, v11")
    k("s_mul_i32 s23, s15, 8320")
    k("s_lshl_b32 s44, s16, 8")
    k("s_add_u32 s23, s23, s44")
    k(f"s_add_u32 s23, s23, {HB + 4}")
    k("v_add_u32 v16, s23, v16")
    for i in range(1, 4):
        k(f"v_add_u32 v{16+i}, {1024*i}, v16")
    k("v_lshlrev_b32 v20, 1, v7")
    k("v_sub_u32 v20, v20, v10")
    k("s_sub_u32 s23, s17, s44")
    k(f"s_add_u32 s23, s23, {512 + 16 - 192}")
    k("v_lshl_add_u32 v20, v20, 4, s23")
    k("v_bfe_u32 v21, v2, 1, 2")
    k("v_xor_b32 v21, v21, v10")
    k("v_xor_b32 v21, s15, v21")
    k("v_lshl_add_u32 v21, v7, 2, v21")
    k("s_lshl_b32 s23, s11, 13")
    k(f"s_add_u32 s23, s23, {RED}")
    k("v_lshl_add_u32 v21, v21, 4, s23")
    k(f"v_add_u32 v4, {HB + 32}, v4")
    k("v_xor_b32 v25, 1, v25")
    k("v_lshlrev_b32 v25, 4, v25")
    k("v_xor_b32 v27, 40, v0")
    k("v_lshlrev_b32 v27, 12, v27")
    k.srd(56, 8, 1792, WS_GBF)
    k.srd(60, 8, SD, WS_X1)
    k("s_lshl_b32 s53, s10, 3")
    k("s_mul_i32 s54, s11, 458752")
    k("s_lshl_b32 s55, s10, 7")
    k("s_add_u32 s54, s54, s55")
    k("s_add_u32 s55, s54, 229376")
    k.wvm("h")
    st.mark()
    for ch in range(2):
        A0, P = 64 + 4 * ch, 72 + ch
        k(f"ds_write_b128 v4, {v(A0,4)} offset:{8320*ch}")
        for e in range(4):
            k(f"v_alignbit_b32 v{76+4*ch+e}, v{A0+e}, v{P if e == 0 else A0+e-1}, 16")
        k(f"ds_write_b128 v4, {v(76+4*ch,4)} offset:{8320*ch+4160}")
    k.wvm("kv")
    k.wlg0()
    k("s_barrier")
    st.mark()
    ACC = 32

    def reads(r, q):
        A, B = (64, 96) if r % 2 == 0 else (128, 160)
        o = 16 * r + 128 * (q & 1)
        return [lambda: k.lg(f"ds_read_b128 {v(B+4*q,4)}, v20 offset:{512*q + 64*(3-r)}", (r, q)),
                lambda: k.lg(f"ds_read2_b32 {v(A+4*q,2)}, v{16+(q>>1)} offset0:{o} offset1:{o+1}", (r, q)),
                lambda: k.lg(f"ds_read2_b32 {v(A+4*q+2,2)}, v{16+(q>>1)} offset0:{o+2} offset1:{o+3}", (r, q))]
    rd = [x for r in range(4) for q in range(8) for x in reads(r, q)]
    sa, ca, ga, dd, A_, B_ = 10, 11, 12, 30, 28, 29
    side = [lambda: k.wvm("mod")] + [x for x in reduce8(8, 9) if x != "s_nop 0"]
    side += ["v_cvt_pk_bf16_f32 v8, v8, v9", "v_lshlrev_b32 v30, v25, s20"]
    side += [f"v_readlane_b32 s{44+i}, v8, {8*i}" for i in range(3)]
    side += ["v_and_b32 v30, 0xffff0000, v30"] + unpack(14, 15, 8)
    side += [f"v_lshlrev_b32 v{10+i}, v25, s{44+i}" for i in range(3)]
    side += [lambda: k.vm("buffer_store_dwordx2 v[14:15], v27, s[56:59], s53 offen", "gb")]
    side += [f"v_and_b32 v{10+i}, 0xffff0000, v{10+i}" for i in range(3)]
    side += ["v_add_f32 v11, 1.0, v11", "v_mul_f32 v29, v12, v10", "v_cvt_pk_bf16_f32 v11, v11, v11",
             "v_lshlrev_b32 v11, 16, v11", "v_mul_f32 v28, v12, v11"]
    side += [lambda: k.wvm("ep")]
    for n in range(2):
        for e in range(4):
            side += unpack(QF + 8 * n + 2 * e, QF + 8 * n + 2 * e + 1, Q + 4 * n + e)
    for i in range(16):
        side.append(f"v_fma_f32 v{R+i}, v{QF+i}, v{R+i}, v{M+i}")
    for i in range(16):
        side.append(f"v_fma_f32 v{R+i}, v{R+i}, v28, v29")
    order = sorted([(q, d) for q in range(8) for d in range(8 - q)], key=lambda t: (max(t), t[0]))
    for x in rd[:12]:
        k.run(x)
    rd = rd[12:]
    seen = set()
    slot = 0
    for r in range(4):
        A, B = (64, 96) if r % 2 == 0 else (128, 160)
        for q, d in order:
            k.wlg((r, max(q, d)))
            n = q + d
            c = v(ACC + 4 * n, 4) if n in seen else "0"
            seen.add(n)
            k(f"v_mfma_f32_16x16x32_bf16 {v(ACC+4*n,4)}, {v(A+4*q,4)}, {v(B+4*d,4)}, {c}")
            issued = 96 - len(rd)
            if rd and issued < 24 * (r + 2):
                k.run(rd.pop(0))
            if slot >= 40 and side:
                k.run(side.pop(0))
            slot += 1
    assert not rd and not side
    st.mark()
    KV, KF, Y = 64, 72, 96
    for n in range(2):
        k.lg(f"ds_read_b128 {v(KV+4*n,4)}, v23 offset:{512*n}", "kvs")
    for n in (0, 1, 2, 3, 4, 5, 6, 7):
        if n == 7:
            k("s_nop 0")
        k.lg(f"ds_write_b128 v21, {v(ACC+4*n,4)} offset:{1024*n}", "red")
    k.wlg("kvs")
    for n in range(2):
        for j in range(4):
            k.run(unpack(KF + 8 * n + 7 - 2 * j, KF + 8 * n + 6 - 2 * j, KV + 4 * n + j))
    k("v_mov_b32 v31, v30")
    k.wlg0()
    k("s_barrier")
    for n in range(2):
        for i in range(2):
            for h in range(2):
                k.lg(f"ds_read_b128 {v(Y+16*n+8*h+4*i,4)}, v{22 if i == 0 else 26} offset:{8192*h+1024*n}", (n, i))
    for n in range(2):
        for i in range(2):
            k.wlg((n, i))
            y0 = Y + 16 * n + 4 * i
            o = 8 * n + 4 * i
            for e in (0, 2):
                k(f"v_pk_add_f32 {v(y0+e,2)}, {v(y0+e,2)}, {v(y0+8+e,2)}")
            for e in (0, 2):
                k(f"v_pk_fma_f32 {v(y0+e,2)}, {v(KF+o+e,2)}, v[30:31], {v(y0+e,2)}")
            for e in (0, 2):
                k(f"v_pk_fma_f32 {v(y0+e,2)}, {v(R+o+e,2)}, {v(y0+e,2)}, {v(QF+o+e,2)}")
            for e in (0, 2):
                k(f"v_cvt_pk_bf16_f32 v{128+4*n+2*i+e//2}, v{y0+e}, v{y0+e+1}")
        k(f"buffer_store_dwordx4 {v(128+4*n,4)}, v24, s[60:63], s{54+n} offen")
    k("s_branch k1_fin")

    k.label("k1_aux")
    k.vmq, k.lgq = [], []
    k("s_load_dwordx4 s[4:7], s[0:1], 56")
    k("s_load_dwordx2 s[12:13], s[0:1], 72")
    k("v_lshrrev_b32 v8, 3, v2")
    k("v_bfe_u32 v9, v2, 4, 1")
    k("v_lshrrev_b32 v4, 5, v2")
    k("s_cmp_ge_u32 s2, 336")
    k("s_cbranch_scc1 k1_wd")
    UP, CT, SBT = 14336, 28672, 28672 + 1024
    k("s_sub_u32 s3, s2, 224")
    k("s_and_b32 s14, s3, 3")
    k("s_lshr_b32 s15, s3, 2")
    k("s_and_b32 s16, s11, 2")
    k("v_or_b32 v9, s16, v9")
    k("v_lshlrev_b32 v9, 1, v9")
    k("v_xor_b32 v9, v9, v2")
    k("v_and_b32 v9, 7, v9")
    k("v_mul_u32_u24 v8, 3584, v8")
    k("v_lshl_add_u32 v8, v9, 4, v8")
    k("s_and_b32 s16, s11, 1")
    k("s_lshl1_add_u32 s16, s14, s16")
    k("s_mul_i32 s16, s16, 200704")
    k("s_lshl_b32 s17, s15, 7")
    k("s_add_u32 s16, s16, s17")
    k("s_mul_i32 s18, s11, 7168")
    k("v_cmp_le_u32 vcc, 112, v0")
    k("v_mov_b32 v6, 1344")
    k("s_mul_i32 s19, s14, 448")
    k("v_cndmask_b32 v6, 0, v6, vcc")
    k("v_lshl_add_u32 v6, v0, 2, v6")
    k("s_add_u32 s19, s19, 5376")
    k("s_waitcnt lgkmcnt(0)")
    k("s_cmp_ge_u32 s11, 2")
    k("s_cselect_b32 s24, s6, s4")
    k("s_cselect_b32 s25, s7, s5")
    k(f"s_mov_b32 s26, {448*3584}")
    k("s_mov_b32 s27, 0x20000")
    k.srd(32, 8, 5 * 10752, WS_MODP)
    for j in range(5):
        k.vm(f"buffer_load_dword v{10+j}, v6, s[32:35], s19 offen", "mod")
        if j < 4:
            k("s_add_u32 s19, s19, 10752")
    for j in range(7):
        k(f"s_add_u32 m0, s18, {1024*j}")
        if j:
            k("s_add_u32 s16, s16, 28672")
        else:
            k("s_nop 0")
        k.vm(f"buffer_load_dwordx4 v8, s[24:27], s16 offen{NT()} lds", "w")
    k.srd(36, 8, WF_BYTES, WS_WF)
    k("s_lshl2_add_u32 s20, s15, s11")
    k("s_mul_i32 s20, s20, 29696")
    k("s_mul_i32 s21, s14, 7168")
    k("s_add_u32 s21, s21, s20")
    k("s_add_u32 s22, s21, 4096")
    k("s_lshr_b32 s23, s14, 1")
    k("s_lshl_b32 s23, s23, 9")
    k("s_and_b32 s14, s14, 1")
    k("s_lshl3_add_u32 s23, s14, s23")
    k("s_add_u32 s23, s23, s20")
    k("s_add_u32 s23, s23, 28672")
    k("v_bfe_u32 v9, v2, 4, 1")
    k("v_bfe_u32 v5, v2, 2, 2")
    k("v_lshl_add_u32 v5, v4, 3, v5")
    k("v_lshlrev_b32 v5, 7, v5")
    k(f"v_mul_u32_u24 v9, {UP}, v9")
    k("v_and_b32 v7, 3, v2")
    k("v_lshl_add_u32 v5, v7, 3, v5")
    k("v_bfe_u32 v7, v2, 3, 2")
    k("v_xor_b32 v7, s11, v7")
    k("v_lshl_add_u32 v5, v7, 5, v5")
    k("v_add_u32 v5, v5, v9")
    k("v_lshlrev_b32 v7, 5, v4")
    k("v_lshlrev_b32 v9, 4, v4")
    k("v_lshlrev_b32 v15, 2, v0")
    k("v_lshlrev_b32 v16, 1, v0")
    k("v_lshl_add_u32 v17, v4, 24, v3")
    k("s_mov_b32 s28, 0x3f803f80")
    k("v_mov_b32 v18, 0")
    k("v_mov_b32 v19, 0")
    k.wvm("mod")
    k("v_add_f32 v10, v10, v11")
    k("v_add_f32 v12, v12, v13")
    k("v_add_f32 v10, v10, v14")
    k("v_add_f32 v10, v10, v12")
    k("v_cvt_pk_bf16_f32 v10, v10, v10")
    k(f"ds_write_b16 v16, v10 offset:{SBT}")
    k("v_lshlrev_b32 v11, 16, v10")
    k("v_add_f32 v11, 1.0, v11")
    k("v_cvt_pk_bf16_f32 v11, v11, v11")
    k("v_lshlrev_b32 v11, 16, v11")
    k(f"ds_write_b32 v15, v11 offset:{CT}")
    k.wvm0()
    k.wlg0()
    st.mark(1)
    k("s_barrier")
    WF0, CF0, F0, OO = 32, 64, 152, 160

    def wrd(kk):
        k.lg(f"ds_read_b64_tr_b16 {v(WF0+4*kk,2)}, v5 offset:{2048*kk}", kk)
        k.lg(f"ds_read_b64_tr_b16 {v(WF0+4*kk+2,2)}, v5 offset:{2048*kk+512}", kk)
        k.lg(f"ds_read_b128 {v(CF0+12*kk,4)}, v7 offset:{CT+448+64*kk}", kk)
        k.lg(f"ds_read_b128 {v(CF0+12*kk+4,4)}, v7 offset:{CT+448+64*kk+16}", kk)
        k.lg(f"ds_read_b128 {v(CF0+12*kk+8,4)}, v9 offset:{SBT+32*kk}", kk)
    wrd(0)
    wrd(1)
    for kk in range(7):
        if kk + 2 < 7:
            wrd(kk + 2)
        k.wlg(kk)
        for j in range(4):
            k.run(unpack(F0 + 2 * j, F0 + 2 * j + 1, WF0 + 4 * kk + j))
        for j in range(4):
            k(f"v_pk_mul_f32 {v(F0+2*j,2)}, {v(F0+2*j,2)}, {v(CF0+12*kk+2*j,2)}")
        O = OO + 4 * kk
        for j in range(4):
            k(f"v_cvt_pk_bf16_f32 v{O+j}, v{F0+2*j}, v{F0+2*j+1}")
        k(f"buffer_store_dwordx4 {v(O,4)}, v3, s[36:39], s{21 + kk//4} offen offset:{1024*(kk%4)}{WT()}")
        for j in range(4):
            k(f"v_dot2c_f32_bf16 v19, v{WF0+4*kk+j}, v{CF0+12*kk+8+j}")
            k(f"v_dot2c_f32_bf16 v18, s28, v{O+j}")
    k("s_nop 2")
    k("v_permlane32_swap_b32 v18, v19")
    k("v_add_f32 v18, v18, v19")
    k("v_cvt_pk_bf16_f32 v19, v18, v18")
    k("v_lshlrev_b32 v19, 16, v19")
    k("v_sub_f32 v18, v18, v19")
    k("v_cvt_pk_bf16_f32 v18, v19, v18")
    k("v_mov_b32 v19, v18")
    k("s_nop 1")
    k("v_permlane32_swap_b32 v18, v19")
    k("buffer_store_dwordx2 v[18:19], v17, s[36:39], s23 offen")
    k("s_branch k1_fin")

    k.label("k1_wd")
    k.vmq, k.lgq = [], []
    k("s_sub_u32 s3, s2, 336")
    k("s_mul_i32 s14, s3, 37")
    k("s_lshr_b32 s14, s14, 8")
    k("s_mul_i32 s15, s14, 7")
    k("s_sub_u32 s15, s3, s15")
    k("v_lshlrev_b32 v9, 2, v9")
    k("v_xor_b32 v9, v9, v2")
    k("v_and_b32 v9, 7, v9")
    k("v_mul_u32_u24 v8, 896, v8")
    k("v_lshl_add_u32 v8, v9, 4, v8")
    k("s_lshl2_add_u32 s14, s14, s11")
    k("s_mul_i32 s16, s14, 57344")
    k("s_lshl_b32 s17, s15, 7")
    k("s_add_u32 s16, s16, s17")
    k("s_lshl_b32 s18, s11, 13")
    k("s_waitcnt lgkmcnt(0)")
    k.srd(24, 12, 1792 * 896)
    for j in range(8):
        k(f"s_add_u32 m0, s18, {1024*j}")
        if j:
            k("s_add_u32 s16, s16, 7168")
        else:
            k("s_nop 0")
        k.vm(f"buffer_load_dwordx4 v8, s[24:27], s16 offen{NT()} lds", j // 2)
    k.srd(36, 8, WD_BYTES, WS_WD)
    k("s_mul_i32 s20, s15, 229376")
    k("s_lshl_b32 s21, s14, 13")
    k("s_add_u32 s20, s20, s21")
    k("s_add_u32 s21, s20, 4096")
    k("v_bfe_u32 v5, v2, 2, 2")
    k("v_lshl_add_u32 v5, v4, 2, v5")
    k("v_lshlrev_b32 v5, 7, v5")
    k("v_and_b32 v6, 3, v2")
    k("v_lshl_add_u32 v5, v6, 3, v5")
    k("v_bfe_u32 v6, v2, 4, 1")
    k("v_lshl_add_u32 v5, v6, 5, v5")
    k("v_bfe_u32 v6, v2, 3, 1")
    k("v_lshl_add_u32 v5, v6, 6, v5")
    k("v_add_u32 v5, s18, v5")
    k("v_xor_b32 v6, 64, v5")
    k.wvm0()
    st.mark(1)
    for t in range(4):
        for dt in range(2):
            for u in range(2):
                k.lg(f"ds_read_b64_tr_b16 {v(32+8*t+4*dt+2*u,2)}, v{5+dt} offset:{2048*t+1024*u}", (t, dt))
    for t in range(4):
        for dt in range(2):
            k.wlg((t, dt))
            k(f"buffer_store_dwordx4 {v(32+8*t+4*dt,4)}, v3, s[36:39], s{20+t//2} offen offset:{2048*(t%2)+1024*dt}{WT()}")
    k.label("k1_fin")
    st.n = 4
    st.flush(8, 56, 10, 0)
    k.label("k1_end")
    k("s_endpgm")
    return k, dict(vgpr=248, lds=LDS, grid=385, block=256)


def gen_k2():
    k = Sched()
    st = Stamps(k, 2, 68)
    XS = 28672
    RED = 4 * XS
    BR, RK, HO, HR = 112, 144, 160, 176
    ACC0, ACC1, G2 = 16, 80, 48
    W0, W1 = 0, 116
    D0, STG = OPT["D0"], OPT["stg"]
    k.label("k2_ffn_kernel")
    st.mark()
    k("s_cmp_ge_u32 s2, 256")
    k("s_cbranch_scc1 k2_end")
    k("s_load_dwordx2 s[6:7], s[0:1], 96")
    k("s_load_dwordx2 s[8:9], s[0:1], 112")
    k("v_lshrrev_b32 v1, 6, v0")
    k("v_and_b32 v2, 63, v0")
    k("v_readfirstlane_b32 s11, v1")
    k("v_lshlrev_b32 v3, 4, v2")
    k("s_and_b32 s3, s2, 7")
    k("s_lshr_b32 s10, s2, 3")
    k("s_and_b32 s12, s10, 3")
    k("s_and_b32 s13, s3, 6")
    k("s_lshl1_add_u32 s12, s13, s12")
    k("s_and_b32 s14, s3, 1")
    k("s_cmp_lt_u32 s2, 32")
    k("s_cbranch_scc1 k2_stat")
    k("s_lshr_b32 s10, s10, 2")
    k("s_sub_u32 s10, s10, 1")
    k("s_mul_i32 s13, s14, 7")
    k("s_add_u32 s13, s13, s10")
    k("s_lshl2_add_u32 s15, s12, s11")
    k("s_mul_i32 s15, s15, 28672")
    k("s_mul_i32 s16, s11, 28672")
    k("s_mul_i32 s17, s11, 14")
    k("s_add_u32 s18, s17, s13")
    k("s_mul_i32 s19, s18, 29696")
    k(f"s_add_u32 s20, s19, {56*29696}")
    k("s_mov_b32 m0, s16")
    k("s_waitcnt lgkmcnt(0)")
    k.srd(24, 8, SD, WS_X1)
    k.srd(28, 8, WF_BYTES, WS_WF)

    def xload(kk):
        def f():
            if kk and kk % 4 == 0:
                k(f"s_add_u32 m0, s16, {1024*kk}")
                k("s_add_u32 s15, s15, 4096")
            k.vm(f"buffer_load_dwordx4 v3, s[24:27], s15 offen offset:{1024*(kk%4)} lds", ("x", kk))
        return f

    def wload(ps, kk):
        def f():
            if kk and kk % 4 == 0:
                k(f"s_add_u32 s{19+ps}, s{19+ps}, 4096")
            k.vm(f"buffer_load_dwordx4 {a((W0, W1)[ps]+4*kk,4)}, v3, s[28:31], s{19+ps} offen offset:{1024*(kk%4)}", ("w", ps, kk))
        return f

    def lane_tr():
        k("v_lshrrev_b32 v4, 5, v2")
        k("v_bfe_u32 v5, v2, 2, 2")
        k("v_and_b32 v6, 3, v2")
        k("v_lshlrev_b32 v6, 3, v6")
        k("v_lshl_add_u32 v6, v5, 6, v6")
        k("v_bfe_u32 v5, v2, 4, 1")
        k("v_lshl_add_u32 v6, v5, 5, v6")
        k("v_lshl_add_u32 v5, v4, 9, v6")
        k("v_and_b32 v1, 31, v2")
        k("v_lshlrev_b32 v7, 4, v1")
    stream = []
    for kk in range(28):
        stream += [xload(kk), wload(0, kk)]
    stream += [wload(0, 28)] + [wload(1, kk) for kk in range(29)]
    for _ in range(8):
        k.run(stream.pop(0))
    lane_tr()
    for jj in range(4):
        k(f"s_xor_b32 s21, s11, {jj}")
        k("s_mul_i32 s22, s21, 28672")
        k(f"v_add_u32 v{8+jj}, s22, v5")
        k("s_lshl2_add_u32 s22, s12, s21")
        k(f"s_lshl_b32 s{64+jj}, s22, 9")
        k("s_mul_i32 s22, s22, 112")
        k("s_add_u32 s22, s22, s18")
        k(f"s_lshl_b32 s{36+jj}, s22, 10")
    for _ in range(2 * D0 - 8):
        k.run(stream.pop(0))

    pre = Sched()
    pre.srd(32, 8, H_BYTES, WS_H)
    pre.srd(40, 8, 0x18000, WS_CNT)
    pre.srd(44, 8, WD_BYTES, WS_WD)
    pre("v_mov_b32 v172, 1")
    pre("v_lshlrev_b32 v173, 17, v2")
    pre(f"v_add_u32 v7, {WS_RK - WS_CNT}, v7")
    pre("s_mul_i32 s21, s12, 2560")
    pre("s_lshl_b32 s22, s11, 7")
    pre("s_add_u32 s48, s21, s22")
    pre("s_lshl1_add_u32 s22, s11, s14")
    pre("s_lshl_b32 s22, s22, 7")
    pre("s_add_u32 s49, s21, s22")
    pre("s_and_b32 s50, s11, 1")
    pre("s_lshr_b32 s51, s11, 1")
    pre("s_lshl1_add_u32 s52, s14, s50")
    pre("s_xor_b32 s53, s52, 2")
    for i in range(2):
        pre(f"s_lshl1_add_u32 s22, s{52+i}, s51")
        pre("s_lshl_b32 s22, s22, 7")
        pre(f"s_add_u32 s{54+i}, s21, s22")
    pre("s_mul_i32 s21, s51, 7")
    pre("s_add_u32 s21, s21, 56")
    pre("s_mov_b32 s56, s17")
    for i in range(2):
        pre(f"s_mul_i32 s{57+i}, s{52+i}, 14")
        pre(f"s_add_u32 s{57+i}, s{57+i}, s21")
    pre("s_mul_i32 s21, s10, 229376")
    for i in range(3):
        pre(f"s_lshl_b32 s{59+i}, s{56+i}, 11")
        pre(f"s_add_u32 s{59+i}, s{59+i}, s21")
        pre(f"s_lshl_b32 s{56+i}, s{56+i}, 10")
    pre("s_lshl_b32 s21, s50, 10")
    pre("v_add_u32 v174, s21, v3")
    pre("v_xor_b32 v175, 0x400, v174")
    pre("s_lshl1_add_u32 s62, s14, s51")
    pre("s_lshl2_add_u32 s63, s12, s62")
    pre("s_mul_i32 s21, s63, 114688")
    pre("v_add_u32 v14, s21, v3")
    pre("s_xor_b32 s21, s63, 1")
    pre("s_mul_i32 s21, s21, 114688")
    pre("v_add_u32 v15, s21, v3")
    pre("s_lshl1_add_u32 s23, s10, s50")
    pre("s_mul_i32 s21, s62, 28672")
    pre("s_lshl_b32 s22, s23, 11")
    pre("s_add_u32 s21, s21, s22")
    pre("v_lshl_add_u32 v6, v4, 8, v6")
    pre("v_add_u32 v6, s21, v6")
    pre("v_lshlrev_b32 v4, 4, v4")
    pre("v_mul_u32_u24 v1, 896, v1")
    pre("v_add_u32 v1, v1, v4")
    pre("s_mul_i32 s4, s63, 28672")
    pre("s_lshl_b32 s21, s23, 6")
    pre("s_add_u32 s4, s4, s21")
    pre("s_lshl_b32 s23, s23, 7")
    pre("s_lshl_b32 s5, s63, 9")
    for j in range(4):
        pre(f"s_xor_b32 s21, s11, {j}")
        pre("s_mul_i32 s21, s21, 12288")
        pre(f"s_add_u32 s21, s21, {RED + 4096*max(j-1, 0)}")
        pre(f"v_add_u32 v{168+j}, s21, v3")
    pl = list(pre.lines)
    side_0 = []
    while pl:
        n = 2 if pl[0].startswith("s_add_u32") and len(pl) > 1 and pl[1].startswith("s_addc") else 1
        side_0.append(pl[:n])
        pl = pl[n:]

    frags = [(kk, jj) for kk in range(28) for jj in range(4)]
    frags += [(kk, jj) for kk in range(28) for jj in range(2)] + [(kk, jj) for kk in range(28) for jj in (2, 3)]
    L = 6

    def bread(i):
        if i >= len(frags):
            return
        kk, jj = frags[i]
        if i < 112 and jj == 0 and kk % STG == 0:
            k.wvm(("x", min(27, kk + STG - 1)))
            k("s_barrier")
            if kk == 0:
                st.mark()
        for u in range(2):
            k.lg(f"ds_read_b64_tr_b16 {v(BR+4*(i%8)+2*u,2)}, v{8+jj} offset:{1024*kk+256*u}", ("b", i))

    def wdreg(t):
        return 232 + 8 * t if t < 3 else (8 * (t - 3) if t < 17 else W1 + 8 * (t - 17))

    def phase(t):
        return (0, t) if t < 14 else ((1, t - 14) if t < 21 else (2, t - 21))

    def wdload(t, dt):
        def f():
            ph, i = phase(t)
            if i and i % 2 == 0 and dt == 0:
                k(f"s_add_u32 s{59+ph}, s{59+ph}, 4096")
            k.vm(f"buffer_load_dwordx4 {a(wdreg(t)+4*dt,4)}, v{174+dt}, s[44:47], s{59+ph} offen offset:{2048*(i%2)}", ("d", t, dt))
        return f
    done_step = [-1]

    def hload(t, stl):
        def f():
            ph, i = phase(t)
            assert t - 10 <= done_step[0]
            if i and i % 4 == 0 and stl == 0:
                k(f"s_add_u32 s{56+ph}, s{56+ph}, 4096")
            k.vm(f"buffer_load_dwordx4 {v(HR+8*(t%10)+4*stl,4)}, v{14+stl}, s[32:35], s{56+ph} offen offset:{1024*(i%4)} sc1", ("h", t, stl))
        return f

    def epi(T, jj, ps, tag):
        O = HO + 4 * (jj % 2)
        out = [f"v_max_f32 v{T+e}, 0, v{T+e}" for e in range(8)]
        out += [f"v_mul_f32 v{T+e}, v{T+e}, v{T+8+e}" for e in range(8)]
        out += [f"v_cvt_pk_bf16_f32 v{O+e}, v{T+2*e}, v{T+2*e+1}" for e in range(4)]
        if ps:
            out.append(f"s_add_u32 s{36+jj}, s{36+jj}, {56*1024}")
        out.append(lambda: k.vm(f"buffer_store_dwordx4 {v(O,4)}, v3, s[32:35], s{36+jj} offen sc1", tag))
        return out

    def signal(tag, sreg, off):
        k.wvm(tag)
        k.vm(f"buffer_atomic_add v172, v173, s[40:43], s{sreg} offen offset:{off} sc1", "sig")

    def poll(name, sreg, off):
        k.vm(f"buffer_load_dword v12, v173, s[40:43], s{sreg} offen offset:{off} sc1", name)
    slow = Asm()

    def check(name, sreg, off, want):
        k.wvm(name)
        k("v_readfirstlane_b32 s21, v12")
        k(f"s_cmp_lt_u32 s21, {want}")
        k(f"s_cbranch_scc1 k2_slow_{name}")
        k.label(f"k2_ok_{name}")
        slow.label(f"k2_slow_{name}")
        slow(f"s_mov_b32 s22, {OPT['spin']}")
        slow.label(f"k2_spin_{name}")
        slow(f"buffer_load_dword v12, v173, s[40:43], s{sreg} offen offset:{off} sc1")
        slow("s_waitcnt vmcnt(0)")
        slow("v_readfirstlane_b32 s21, v12")
        slow(f"s_cmp_ge_u32 s21, {want}")
        slow(f"s_cbranch_scc1 k2_ok_{name}")
        slow("s_sub_u32 s22, s22, 1")
        slow("s_cmp_lg_u32 s22, 0")
        slow(f"s_cbranch_scc1 k2_spin_{name}")
        slow(f"s_branch k2_ok_{name}")

    def rkload(em):
        return [f"buffer_load_dwordx4 {v(RK+4*jj,4)}, v7, s[40:43], s{64+jj} offen sc1" for jj in range(4)]
    rktest = [f"v_min3_u32 v12, v{RK+1}, v{RK+3}, v{RK+5}", f"v_min3_u32 v13, v{RK+7}, v{RK+9}, v{RK+11}",
              f"v_min3_u32 v12, v12, v{RK+13}, v{RK+15}", "v_min_u32 v12, v12, v13", "v_cmp_eq_u32 vcc, 0, v12", "s_nop 4"]

    def rkcheck():
        k.wvm("rk")
        k.run(rktest)
        k("s_cbranch_vccnz k2_slow_rk")
        k.label("k2_ok_rk")
        slow.label("k2_slow_rk")
        slow(f"s_mov_b32 s22, {OPT['spin']}")
        slow.label("k2_spin_rk")
        for x in rkload(slow) + ["s_waitcnt vmcnt(0)"] + rktest:
            slow(x)
        slow("s_cbranch_vccz k2_ok_rk")
        slow("s_sub_u32 s22, s22, 1")
        slow("s_cmp_lg_u32 s22, 0")
        slow("s_cbranch_scc1 k2_spin_rk")
        slow("s_branch k2_ok_rk")

    def rank(acc, ps, jj):
        k.wvm(("w", ps, 28))
        k(f"v_mfma_f32_32x32x16_bf16 {v(acc,16)}, {a((W0, W1)[ps]+112,4)}, {v(RK+4*jj,4)}, {v(acc,16)}")

    for i in range(L):
        bread(i)
    side_a = [None] * (2 * OPT["fa"])
    for jj in range(4):
        side_a += epi(ACC0 + 16 * jj, jj, 0, "ha")
    side_b = [None] * 6
    for jj in range(2):
        side_b += epi(ACC1 + 16 * jj, jj, 1, "hb")
    wd = [(t, dt) for t in range(28) for dt in range(2)]
    g2 = []

    def build_g2():
        rest = set(wd)
        for ph, (t0, t1) in enumerate(((0, 14), (14, 21), (21, 28))):
            chk = None if ph == 0 else ("pb", 54, 512, 7) if ph == 1 else ("pc", 55, 1536, 7)
            for t in range(t0, t1):
                g2.extend(("ld", t, wdload(t, dt), "d") for dt in range(2) if (t, dt) in rest)
            if chk:
                g2.insert(len(g2) - OPT["PL"], ("x", -1, lambda c=chk: poll(*c[:3])))
                g2.append(("x", -1, lambda c=chk: check(*c)))
            for t in range(t0, t1):
                g2.extend(("ld", t, hload(t, stl), "h") for stl in range(2))
    for i, (kk, jj) in enumerate(frags):
        ps = 0 if i < 112 else 1
        sub = 0 if i < 112 else (1 if i < 168 else 2)
        acc = (ACC0 + 16 * jj, ACC1 + 16 * jj, ACC0 + 16 * (jj - 2))[sub]
        k.wvm(("w", ps, kk))
        k.wlg(("b", i))
        c = "0" if kk == 0 else v(acc, 16)
        k(f"v_mfma_f32_32x32x16_bf16 {v(acc,16)}, {a((W0, W1)[ps]+4*kk,4)}, {v(BR+4*(i%8),4)}, {c}")
        if sub == 0:
            if jj % 2 == 1 and stream:
                k.run(stream.pop(0))
            elif side_0:
                k.run(side_0.pop(0))
                if side_0:
                    k.run(side_0.pop(0))
            if kk == OPT["rkl"] and jj == 0:
                assert not side_0
                for x in rkload(k):
                    k.vm(x, "rk")
        bread(i + L)
        if i == 111:
            rkcheck()
            for j2 in range(4):
                rank(ACC0 + 16 * j2, 0, j2)
            st.mark()
        if sub == 1:
            n = i - 112
            for _ in range(OPT["fa"]):
                if side_a:
                    k.run(side_a.pop(0))
            if n % 2 == 1:
                if stream:
                    k.run(stream.pop(0))
                else:
                    wdload(*wd.pop(0))()
            if n == 56 + OPT["siga"]:
                signal("ha", 48, 0)
            if n == 55:
                assert not side_a and not stream
                for j2 in range(2):
                    rank(ACC1 + 16 * j2, 1, j2)
                st.mark()
        if sub == 2:
            n = i - 168
            for _ in range(2):
                if side_b:
                    k.run(side_b.pop(0))
            if n == OPT["siga"]:
                signal("ha", 48, 0)
            if n == OPT["sigb"]:
                signal("hb", 49, 512)
            if n == OPT["pa"]:
                poll("pa", 48, 0)
            if n == OPT["ca"]:
                check("pa", 48, 0, 14)
                build_g2()
            if n % OPT["wdstep"] == 1:
                if g2:
                    g2.pop(0)[2]()
                elif 56 - len(wd) < 34:
                    wdload(*wd.pop(0))()
    assert not side_b
    for j2 in range(2):
        rank(ACC0 + 16 * j2, 1, 2 + j2)
    st.mark()
    XR, GB, XF = 112, 120, 136
    for r in range(4):
        k.lg(f"ds_read_b64_tr_b16 {v(XR+2*r,2)}, v6 offset:{512*r}", "xr")
    if g2:
        for _ in range(6):
            g2.pop(0)[2]()
    k("s_nop 5")
    for jj in range(2):
        k.run(epi(ACC0 + 16 * jj, 2 + jj, 1, "hc"))
    if not g2:
        check("pa", 48, 0, 14)
        build_g2()
    st.mark()
    sig_done = False
    side_c = [lambda: k.wlg("xr")]
    for r in range(8):
        side_c += unpack(XF + 2 * r, XF + 2 * r + 1, XR + r)
    tmp = Asm()
    tmp.srd(28, 8, 1792, WS_GBF)
    tmp.srd(24, 6, SD)
    side_c += [tmp.lines[:2]] + tmp.lines[2:]

    def feed(t, cap):
        n = 0
        while g2 and n < cap:
            need = any(e[0] == "ld" and e[1] <= t for e in g2)
            ahead = sum(1 for q in k.vmq if isinstance(q, tuple) and q[0] in "dh" and q[1] > t)
            if not need and ahead >= OPT["LA"]:
                break
            e = g2[0]
            if e[0] == "ld" and e[3] == "h" and e[1] - 10 > done_step[0]:
                break
            g2.pop(0)[2]()
            n += e[0] == "ld"
    ep_loaded = False
    for t in range(28):
        feed(t, 99 if t == 0 else 0)
        while any(e[0] == "ld" and e[1] <= t for e in g2):
            g2.pop(0)[2]()
        k.wvm(("h", t, 0), ("h", t, 1), ("d", t, 0), ("d", t, 1))
        if not sig_done and "hc" not in k.vmq:
            signal("hc", 49, 1536)
            sig_done = True
        for j in range(4):
            c = "0" if t == 0 else v(G2 + 16 * j, 16)
            k(f"v_mfma_f32_32x32x16_bf16 {v(G2+16*j,16)}, {a(wdreg(t)+4*(j&1),4)}, {v(HR+8*(t%10)+4*(j>>1),4)}, {c}")
            if j == 3:
                done_step[0] = t
            feed(t + 1, 1)
            if side_c:
                k.run(side_c.pop(0))
        if not g2 and not ep_loaded:
            assert not side_c
            ep_loaded = True
            k.vm("buffer_load_dword v13, v7, s[40:43], s5 offen offset:4 sc1", "gb")
            for r in range(4):
                k.vm(f"buffer_load_dwordx4 {v(GB+4*r,4)}, v4, s[28:31], s23 offen offset:{32*r}", "gb")
        if t in (13, 20):
            st.mark()
    assert sig_done and ep_loaded
    st.mark()
    k.wvm0()
    k("v_and_b32 v13, 0xffff0000, v13")
    k("v_mul_f32 v13, v13, v13")
    k("v_rcp_f32 v12, v13")
    k("s_nop 5")
    for j in range(1, 4):
        for r in range(4):
            k(f"ds_write_b128 v168, {v(G2+16*j+4*r,4)} offset:{4096*(j-1)+1024*r}")
    for e in range(0, 16, 2):
        k(f"v_pk_mul_f32 {v(GB+e,2)}, {v(GB+e,2)}, v[12:13] op_sel_hi:[1,0]")
    k.wlg0()
    k("s_barrier")
    for r in range(4):
        for j in range(1, 4):
            k.lg(f"ds_read_b128 {v(G2+16*j+4*r,4)}, v{168+j} offset:{1024*r}", r)
    O = 16
    for r in range(4):
        k.wlg(r)
        for e in (0, 2):
            x = 4 * r + e
            k(f"v_pk_add_f32 {v(G2+x,2)}, {v(G2+x,2)}, {v(G2+16+x,2)}")
            k(f"v_pk_add_f32 {v(G2+32+x,2)}, {v(G2+32+x,2)}, {v(G2+48+x,2)}")
        for e in (0, 2):
            x = 4 * r + e
            k(f"v_pk_add_f32 {v(G2+x,2)}, {v(G2+x,2)}, {v(G2+32+x,2)}")
        for e in (0, 2):
            x = 4 * r + e
            k(f"v_pk_fma_f32 {v(G2+x,2)}, {v(G2+x,2)}, {v(GB+x,2)}, {v(XF+x,2)}")
        for e in (0, 2):
            x = 4 * r + e
            k(f"v_cvt_pk_bf16_f32 v{O+x//2}, v{G2+x}, v{G2+x+1}")
        if r % 2 == 1:
            b = O + 2 * (r - 1)
            k("s_nop 1")
            k(f"v_permlane32_swap_b32 v{b}, v{b+2}")
            k(f"v_permlane32_swap_b32 v{b+1}, v{b+3}")
            k(f"buffer_store_dwordx4 {v(b,4)}, v1, s[24:27], s4 offen offset:{16*(r-1)}")
    nst = st.n
    k.label("k2_fin")
    st.flush(8, 56, 10, 0)
    k.label("k2_end")
    k("s_endpgm")
    k.lines += slow.lines

    k.label("k2_stat")
    k.vmq, k.lgq = [], []
    k("s_lshl1_add_u32 s12, s12, s14")
    k("s_mul_i32 s15, s12, 57344")
    k("s_mul_i32 s16, s11, 14336")
    k("s_add_u32 s15, s15, s16")
    k("s_mov_b32 m0, s16")
    k("s_waitcnt lgkmcnt(0)")
    k.srd(24, 8, SD, WS_X1)
    for kk in range(14):
        xload(kk)()
    lane_tr()
    k("v_add_u32 v8, s16, v5")
    k.srd(40, 8, 32768, WS_RK)
    k("s_mov_b32 s23, 0x3f803f80")
    k("v_mov_b32 v12, 0")
    k("v_mov_b32 v13, 0")
    k("v_lshlrev_b32 v9, 3, v0")
    k("v_xor_b32 v10, 0x200, v9")
    k("s_lshr_b32 s17, s11, 1")
    k("s_lshl1_add_u32 s17, s12, s17")
    k("s_lshl_b32 s17, s17, 9")
    k("s_and_b32 s18, s11, 1")
    k("v_or_b32 v4, s18, v4")
    k("v_lshl_add_u32 v7, v4, 16, v7")
    for kk in range(16):
        if kk < 14:
            k.wvm(("x", kk))
            for u in range(2):
                k.lg(f"ds_read_b64_tr_b16 {v(16+4*kk+2*u,2)}, v8 offset:{1024*kk+256*u}", ("s", kk))
        if kk >= 2:
            k.wlg(("s", kk - 2))
            for e in range(4):
                k(f"v_dot2c_f32_bf16 v12, s23, v{8+4*kk+e}")
                k(f"v_dot2c_f32_bf16 v13, v{8+4*kk+e}, v{8+4*kk+e}")
    k("s_nop 2")
    k(f"ds_write_b64 v9, v[12:13] offset:{57344}")
    k.wlg0()
    k("s_barrier")
    k(f"ds_read_b64 v[14:15], v10 offset:{57344}")
    k.wlg0()
    k("v_pk_add_f32 v[12:13], v[12:13], v[14:15]")
    k("v_mov_b32 v14, v12")
    k("v_mov_b32 v15, v13")
    k("s_nop 1")
    k("v_permlane32_swap_b32 v12, v14")
    k("v_permlane32_swap_b32 v13, v15")
    k("v_pk_add_f32 v[12:13], v[12:13], v[14:15]")
    k.run(ln_finish(12, 13, 14))
    k("v_cvt_pk_bf16_f32 v16, -v12, -v12")
    k("v_cvt_pk_bf16_f32 v17, v13, v13")
    k("v_mov_b32 v18, v16")
    k("v_mov_b32 v19, v17")
    k("buffer_store_dwordx4 v[16:19], v7, s[40:43], s17 offen sc1")
    k("s_branch k2_fin")
    return k, dict(vgpr=256, agpr=256, lds=RED + 49152, grid=256, block=256)


def gen_empty():
    k = Asm()
    k.label("kx_empty_kernel")
    k("s_endpgm")
    return k, dict(vgpr=8, lds=0, grid=224, block=256)


def gen_diag():
    k = Asm()
    k.label("kd_diag_kernel")
    k("s_cmp_ge_u32 s2, 1")
    k("s_cbranch_scc1 kd_end")
    k("s_load_dwordx2 s[4:5], s[0:1], 112")
    k("s_waitcnt lgkmcnt(0)")
    k(f"s_add_u32 s4, s4, {WS_STAMP}")
    k("s_addc_u32 s5, s5, 0")
    da, db = OPT["da"], OPT["db"]
    wg = OPT.get("dwg", 8)
    k(f"s_load_dword s6, s[4:5], {wg*64}")
    k(f"s_load_dword s7, s[4:5], {(da//16)*0x10000 + wg*64 + (da%16)*4}")
    k(f"s_load_dword s8, s[4:5], {(db//16)*0x10000 + wg*64 + (db%16)*4}")
    k("s_waitcnt lgkmcnt(0)")
    k("s_sub_u32 s8, s8, s7")
    k("s_add_u32 s8, s8, 10000")
    k("s_mov_b32 s9, 100000")
    k.label("kd_loop")
    k("s_memrealtime s[10:11]")
    k("s_waitcnt lgkmcnt(0)")
    k("s_sub_u32 s10, s10, s6")
    k("s_cmp_ge_u32 s10, s8")
    k("s_cbranch_scc1 kd_end")
    k("s_sub_u32 s9, s9, 1")
    k("s_cmp_lg_u32 s9, 0")
    k("s_cbranch_scc1 kd_loop")
    k.label("kd_end")
    k("s_endpgm")
    return k, dict(vgpr=8, lds=0, grid=1, block=64)


def build(path):
    ref = open(f"cdna_kernels/{NAME}.s.ref").read().splitlines()
    head = [l for l in ref if l.startswith(";") and "@launch" not in l and "Override launch" not in l and "grid=ceil" not in l]
    ks = [gen_k0(), gen_k1(), gen_k2()]
    launches = list(ks)
    if "da" in OPT:
        e = gen_diag()
        ks.append(e)
        launches.append(e)
    if OPT["extra"]:
        e = gen_empty()
        ks.append(e)
        launches += [e] * OPT["extra"]
    out = "\n".join(head) + "\n"
    for k, m in launches:
        out += f"; @launch kernel={k.lines[0][:-1]} grid=({m['grid']},1,1) block=({m['block']},1,1) lds={m['lds']}\n"
    out += '.amdgcn_target "amdgcn-amd-amdhsa--gfx950"\n.text\n'
    nbad = 0
    for k, m in ks:
        nm = k.lines[0][:-1]
        for b in check_hazards(k.lines, nm):
            print("HAZARD", b)
            nbad += 1
        out += f".globl {nm}\n.p2align 8\n.type {nm},@function\n" + k.text()
    out += ".p2align 8\ncode_end:\n    s_endpgm\n"
    out += '.section .rodata,"a"\n'
    for k, m in ks:
        nm = k.lines[0][:-1]
        acc = (m["vgpr"] + 3) // 4 * 4
        out += f""".p2align 6
.amdhsa_kernel {nm}
  .amdhsa_next_free_vgpr {m['vgpr'] + m.get('agpr', 0)}
  .amdhsa_next_free_sgpr 96
  .amdhsa_accum_offset {acc}
  .amdhsa_group_segment_fixed_size 0
  .amdhsa_kernarg_size 120
  .amdhsa_user_sgpr_count 2
  .amdhsa_user_sgpr_kernarg_segment_ptr 1
  .amdhsa_system_sgpr_workgroup_id_x 1
  .amdhsa_float_denorm_mode_32 3
.end_amdhsa_kernel
"""
    open(path, "w").write(out)
    print("wrote", path, len(out), "bytes; hazards:", nbad)


if __name__ == "__main__":
    path = sys.argv[1] if len(sys.argv) > 1 else f"cdna_kernels/{NAME}.s"
    for o in sys.argv[2:]:
        key, val = o.split("=")
        OPT[key] = int(val)
    build(path)
```
